```python
import torch

def _softmax(x, axis=-1):
    return torch.softmax(x, dim=axis)
def _gelu(x):
    return torch.nn.functional.gelu(x, approximate="tanh")
def _silu(x):
    return torch.nn.functional.silu(x)
def _sigmoid(x):
    return torch.sigmoid(x)
def _layernorm(x, axis=-1, eps=1e-5):
    m = x.mean(dim=axis, keepdim=True)
    v = x.var(dim=axis, keepdim=True, unbiased=False)
    return (x - m) / torch.sqrt(v + eps)
def _scatter_add(tgt, idx, src, axis=0):
    return tgt.clone().index_add_(axis, idx, src)
def _segment_sum(src, seg, n):
    out = torch.zeros((n,) + src.shape[1:], dtype=src.dtype)
    return out.index_add_(0, seg, src)
def _pad(x, pw):
    flat = tuple(v for pair in reversed(pw) for v in pair)
    return torch.nn.functional.pad(x, flat)

kernel_name = 'standalone__mha_block_cached__near_ridge'

def setup_inputs():

    _w = (lambda a: (lambda t: t.to(torch.bfloat16) if t.is_floating_point() else t)(torch.as_tensor(a)))
    B, Sq, D = 8, 256, 576
    H, Sk, Dh = 32, 1024, 128
    return {
        "x": _w((lambda *s: torch.randn(*s, dtype=torch.bfloat16) * 0.8)(B, Sq, D)),
        "k_cache": _w((lambda *s: torch.randn(*s, dtype=torch.bfloat16) * 0.8)(B, H, Sk, Dh)),
        "v_cache": _w((lambda *s: torch.randn(*s, dtype=torch.bfloat16) * 0.05)(B, H, Sk, Dh)),
        "wq": _w((lambda *s: torch.randn(*s, dtype=torch.bfloat16) * 0.8)(D, H * Dh) * (D ** -0.5)),
        "wo": _w((lambda *s: torch.randn(*s, dtype=torch.bfloat16) * 0.05)(H * Dh, D) * ((H * Dh) ** -0.5)),
    }

def reference(x, k_cache, v_cache, wq, wo):
    B, Sq, D = x.shape
    H, Dh = 32, 128
    q = (lambda x, *d: x.permute(*d))((x @ wq).reshape(B, Sq, H, Dh), 0, 2, 1, 3)
    scores = torch.einsum("bhqd,bhkd->bhqk", q, k_cache) * (Dh ** -0.5)
    p = _softmax(scores, axis=-1)
    o = torch.einsum("bhqk,bhkd->bhqd", p, v_cache)
    return (lambda x, *d: x.permute(*d))(o, 0, 2, 1, 3).reshape(B, Sq, H * Dh) @ wo
```

```python
import re

class Prog:
    def __init__(self):
        self.lines = []
    def e(self, s):
        for ln in s.split('\n'):
            ln = ln.rstrip()
            if ln.strip():
                self.lines.append(ln if ln.endswith(':') or ln.startswith('.') or ln.startswith(';') else '  ' + ln.strip())
    def label(self, name):
        self.lines.append(name + ':')
    def text(self):
        return '\n'.join(self.lines) + '\n'

def vr(base, n=1):
    return f'v{base}' if n == 1 else f'v[{base}:{base+n-1}]'
def ar(base, n=1):
    return f'a{base}' if n == 1 else f'a[{base}:{base+n-1}]'
def sr(base, n=1):
    return f's{base}' if n == 1 else f's[{base}:{base+n-1}]'

_reg = re.compile(r'^(-|\|)?([vas])(?:(\d+)|\[(\d+):(\d+)\])\|?$')
def regs_of(tok):
    tok = tok.strip()
    if tok in ('vcc',): return [('s', 'vcc')]
    if tok in ('vcc_lo', 'vcc_hi'): return [('s', 'vcc')]
    if tok == 'exec': return [('s', 'exec')]
    if tok == 'm0': return [('s', 'm0')]
    m = _reg.match(tok)
    if not m: return []
    f = m.group(2)
    if m.group(3) is not None: lo = hi = int(m.group(3))
    else: lo, hi = int(m.group(4)), int(m.group(5))
    return [(f, i) for i in range(lo, hi + 1)]

TRANS = ('v_exp_f32', 'v_rcp_f32', 'v_log_f32', 'v_rsq_f32', 'v_sqrt_f32')

class Ins:
    __slots__ = ('text', 'op', 'ops', 'w', 'r', 'cls', 'srcC', 'idx')
def parse(line):
    t = line.split(';')[0].strip()
    if not t or t.endswith(':') or t.startswith('.'): return None
    parts = t.split(None, 1)
    op = parts[0]
    rest = parts[1] if len(parts) > 1 else ''
    ops = [o.strip() for o in re.split(r',(?![^\[]*\])', rest)] if rest else []
    mods = []
    if ops:
        sp = ops[-1].split()
        ops[-1] = sp[0]; mods = sp[1:]
    I = Ins(); I.text = t; I.op = op; I.ops = ops; I.w = []; I.r = []; I.srcC = []
    base = op.replace('_e32', '').replace('_e64', '')
    if op.startswith('v_mfma'):
        I.cls = 'mfma'; I.w = regs_of(ops[0]); I.r = regs_of(ops[1]) + regs_of(ops[2]); I.srcC = regs_of(ops[3])
    elif op.startswith('ds_read'):
        I.cls = 'dsr'; I.w = regs_of(ops[0]); I.r = regs_of(ops[1])
    elif op.startswith('ds_write'):
        I.cls = 'dsw'; I.r = sum((regs_of(o) for o in ops), [])
    elif op.startswith('buffer_load'):
        if 'lds' in mods:
            I.cls = 'dma'; I.r = sum((regs_of(o) for o in ops), []) + [('s', 'm0')]
        else:
            I.cls = 'vld'; I.w = regs_of(ops[0]); I.r = sum((regs_of(o) for o in ops[1:]), [])
    elif op.startswith('global_load'):
        I.cls = 'vld'; I.w = regs_of(ops[0]); I.r = sum((regs_of(o) for o in ops[1:]), [])
    elif op.startswith('buffer_store') or op.startswith('global_store'):
        I.cls = 'vst'; I.r = sum((regs_of(o) for o in ops), [])
    elif op.startswith('global_atomic') or op.startswith('buffer_atomic'):
        I.cls = 'vat'
        if 'sc0' in mods: I.w = regs_of(ops[0]); I.r = sum((regs_of(o) for o in ops[1:]), [])
        else: I.r = sum((regs_of(o) for o in ops), [])
    elif op.startswith('buffer_wbl2') or op.startswith('buffer_inv'):
        I.cls = 'vst'
    elif op.startswith('s_load') or op.startswith('s_memtime') or op.startswith('s_memrealtime'):
        I.cls = 'smem'; I.w = regs_of(ops[0]); I.r = sum((regs_of(o) for o in ops[1:]), [])
    elif op in ('s_waitcnt', 's_nop', 's_barrier', 's_branch', 's_endpgm', 's_sleep', 's_setprio') or op.startswith('s_cbranch'):
        I.cls = 'sctl'
        if op == 's_waitcnt': I.ops = rest.split()
    elif op.startswith('s_cmp') or op.startswith('s_bitcmp'):
        I.cls = 'salu'; I.r = sum((regs_of(o) for o in ops), [])
    elif op.startswith('s_'):
        I.cls = 'salu'; I.w = regs_of(ops[0]); I.r = sum((regs_of(o) for o in ops[1:]), [])
        if 'saveexec' in op: I.w += [('s', 'exec')]; I.r += [('s', 'exec')]
    elif op.startswith('v_'):
        I.cls = 'valu'
        if base.startswith('v_cmp'):
            I.w = regs_of(ops[0]); I.r = sum((regs_of(o) for o in ops[1:]), [])
        elif base.startswith('v_permlane') and 'swap' in base:
            I.w = regs_of(ops[0]) + regs_of(ops[1]); I.r = list(I.w); I.cls = 'perm'
        elif base in ('v_readfirstlane_b32', 'v_readlane_b32'):
            I.w = regs_of(ops[0]); I.r = sum((regs_of(o) for o in ops[1:]), []); I.cls = 'rdl'
        elif base in ('v_add_co_u32', 'v_addc_co_u32', 'v_sub_co_u32'):
            I.w = regs_of(ops[0]) + regs_of(ops[1]); I.r = sum((regs_of(o) for o in ops[2:]), [])
        else:
            I.w = regs_of(ops[0]); I.r = sum((regs_of(o) for o in ops[1:]), [])
            if base in ('v_fmac_f32', 'v_dot2c_f32_bf16', 'v_pk_fmac_f16'): I.r += I.w
            if base == 'v_cndmask_b32' and len(ops) == 3: I.r += [('s', 'vcc')]
    else:
        raise ValueError('unknown op: ' + t)
    return I

def ws_of(I):
    if I.op == 's_nop': return int(I.ops[0], 0) + 1
    return 1

def check_trace(lines, name='', verbose=True, passes16=4):
    ins = [i for i in (parse(l) for l in lines) if i is not None]
    errs = []
    pos = []; p = 0
    for I in ins:
        pos.append(p); p += ws_of(I)
    lastw = {}
    lastC = {}
    laststore = {}
    lgkm = []
    vm = []
    pend = {}
    def dist(i, j):
        return pos[j] - pos[i] - ws_of(ins[i])
    for j, I in enumerate(ins):
        reads = I.r + I.srcC
        if I.op == 's_waitcnt':
            for tok in I.ops:
                m = re.match(r'(vmcnt|lgkmcnt)\((\d+)\)', tok)
                if not m: continue
                n = int(m.group(2))
                q = vm if m.group(1) == 'vmcnt' else lgkm
                if m.group(1) == 'lgkmcnt':
                    if n == 0:
                        drop = list(q); q.clear()
                    else:
                        drop = []
                        while sum(1 for x in q if not x[2]) > n:
                            k = next(i for i, x in enumerate(q) if not x[2])
                            drop.append(q.pop(k))
                    for x in drop:
                        for r in x[1]:
                            if pend.get(r, (None, None))[1] == x[0]: del pend[r]
                    continue
                while len(q) > n:
                    x = q.pop(0)
                    for r in x[1]:
                        if pend.get(r, (None, None))[1] == x[0]: del pend[r]
        for r in reads + I.w:
            if r in pend and not (I.cls in ('dsr', 'vld') and r in I.w and r not in reads):
                errs.append(f'{name}: [{j}] {I.text}  touches {r} still pending from [{pend[r][1]}] {ins[pend[r][1]].text}')
        for r in I.w:
            if r in pend and I.cls in ('dsr', 'vld'):
                errs.append(f'{name}: [{j}] {I.text}  overwrites pending load dest {r} from [{pend[r][1]}]')
        for r in reads:
            if r in lastw:
                i, kind = lastw[r]
                d = dist(i, j)
                P = ins[i]
                need = 0
                if kind == 'mfma':
                    np_ = 8 if '32x32' in P.op else passes16*2
                    valu_need = 12 if '32x32' in P.op else 8
                    if I.cls == 'mfma':
                        if r in I.srcC and r not in I.r:
                            same = (set(I.srcC) == set(P.w))
                            need = 0 if same else (10 if '32x32' in P.op else 6)
                        else: need = valu_need
                    else: need = valu_need
                elif kind in ('valu', 'perm', 'trans', 'rdl'):
                    if I.cls == 'mfma' and r[0] in 'va': need = 2
                    elif I.cls == 'perm': need = 2
                    elif I.cls == 'rdl' and r[0] == 'v': need = 1
                    elif kind == 'trans' and I.cls in ('valu', 'perm'): need = 1
                    if r[0] == 's':
                        if I.cls in ('dma', 'vld', 'vst', 'vat'): need = max(need, 5)
                        elif I.cls in ('valu', 'perm'): need = max(need, 2)
                        elif I.cls == 'rdl': need = max(need, 4)
                elif kind == 'salu':
                    if r == ('s', 'm0') and I.cls == 'dma': need = 1
                if d < need:
                    errs.append(f'{name}: [{j}] {I.text}  reads {r} {d} states after [{i}] {P.text} (need {need})')
        for r in I.w:
            if r in lastw:
                i, kind = lastw[r]
                if kind == 'mfma' and I.cls != 'mfma':
                    need = 12 if '32x32' in ins[i].op else 8
                    if dist(i, j) < need:
                        errs.append(f'{name}: [{j}] {I.text}  WAW on {r} {dist(i,j)} after mfma [{i}] (need {need})')
                if kind == 'mfma' and I.cls == 'mfma' and not (set(I.w) == set(ins[i].w)):
                    if dist(i, j) < 6: errs.append(f'{name}: [{j}] {I.text} mfma WAW overlap {r}')
            if r in lastC and I.cls in ('valu', 'trans', 'perm'):
                need = 7 if '32x32' in ins[lastC[r]].op else 3
                if dist(lastC[r], j) < need:
                    errs.append(f'{name}: [{j}] {I.text}  VALU overwrites srcC {r} {dist(lastC[r], j)} after [{lastC[r]}] (need {need})')
            if r in laststore and I.cls in ('valu', 'perm', 'mfma', 'dsr', 'vld'):
                if dist(laststore[r], j) < 2:
                    errs.append(f'{name}: [{j}] {I.text}  overwrites store data {r} too early')
        kind = I.cls
        if kind == 'valu' and I.op.replace('_e32','').replace('_e64','') in TRANS: kind = 'trans'
        for r in I.w:
            lastw[r] = (j, kind)
        for r in I.srcC: lastC[r] = j
        if I.cls == 'vst' and ('x4' in I.op or 'x3' in I.op):
            for r in I.r: laststore[r] = j
        if I.cls in ('dsr', 'dsw'):
            lgkm.append((j, list(I.w), False))
            for r in I.w: pend[r] = ('lgkm', j)
        elif I.cls == 'smem':
            lgkm.append((j, list(I.w), True))
            for r in I.w: pend[r] = ('lgkm', j)
        elif I.cls in ('vld', 'vst', 'dma', 'vat'):
            vm.append((j, list(I.w), False))
            for r in I.w: pend[r] = ('vm', j)
    if verbose:
        print(f'check {name}: {len(ins)} instrs, {len(errs)} problems')
        for e_ in errs[:40]: print('   ', e_)
    return errs
```

```python
import sys, math
sys.path.insert(0, 'gen')
from asmlib import *

KN = 'standalone__mha_block_cached__near_ridge_kernel'

class Cfg:
    mapping = 'm48'
    stamps = False
    stop = None
    rot = True
    nt = True
    prefetch_code = True

ACC = 0
LAC = 128
SB  = 144
PB  = 160
NM  = 168
vKr = 184
vVr = 188
vKVd = 196
vWOd = 198
vWOr = 207
vL16 = 208
vXd = 209
vWd = 217
vXr = 221
vWr = 223
vT = 232
aQ = 0
aK = 64
aV = 96
aONE = 128
aXA, aWA = 132, 148
aXB, aWB = 180, 196
aOB = 0
aWO = 128
OACC = 0

sX, sWQ, sK, sV, sWO, sOW, sPT, sOUT = 20, 24, 28, 32, 36, 40, 44, 48
sB_, sH, sW, sHG, sHH, sMH, sNQ = 52, 53, 54, 55, 56, 57, 58
sXoff, sWoff, sBase, sDelta, sKch, sCnt = 59, 60, 61, 62, 63, 64
sXL, sWL = 65, 66
sKVo, sKVl = 67, 68
sVo = 69
sT0, sT1, sT2, sT3 = 70, 71, 72, 73
sScale = 74
sWOo = 76
sOo = 77
sStamp = 80

OFF_P = 0x1100000
PGRP = 4*4*18*1024
LDS_Q0 = 16384
G_BASE = [90112, 126976, 0, 36864]
SCALE = math.log2(math.e) / math.sqrt(128.0)
import struct
def f32bits(x): return struct.unpack('<I', struct.pack('<f', x))[0]

def acc(qb, tau): return ACC + (qb*8 + tau)*4

class Gen:
    def __init__(self, cfg):
        self.c = cfg
        self.p = Prog()
        self.nstamp = 0
        self.blocks = {}
    def e(self, s): self.p.e(s)
    def mark(self, name):
        self.blocks[name] = len(self.p.lines)
    def stamp(self):
        if not self.c.stamps: return
        i = self.nstamp; self.nstamp += 1
        self.e(f's_memrealtime {sr(sStamp+2*i,2)}')
    def stream(self, mfmas, gaps, tail=None):
        for i, m in enumerate(mfmas):
            self.e(m)
            fl = gaps.get(i, [])
            nonv = [x for x in fl if not x.lstrip().startswith('v_')]
            val = [x for x in fl if x.lstrip().startswith('v_')]
            for x in nonv + val: self.e(x)
        extra = [k for k in gaps if k >= len(mfmas) or k < 0]
        assert not extra, extra

    def setup(self):
        c = self.c
        self.e(f'''s_cmp_ge_u32 s2, 256
s_cbranch_scc1 L_end
s_load_dwordx16 s[4:19], s[0:1], 0''')
        self.stamp()
        if c.prefetch_code:
            self.e('s_getpc_b64 s[100:101]')
            self.e(f'v_lshlrev_b32 v{vT}, 4, v0')
            self.e(f's_lshr_b32 s{sT2}, s2, 3')
            self.pf_at = len(self.p.lines)
            self.e('; PFCODE')
        if c.mapping == 'A':
            self.e(f's_and_b32 s{sB_}, s2, 7\ns_lshr_b32 s{sH}, s2, 3')
        else:
            self.e(f'''s_and_b32 s{sT0}, s2, 7
s_lshr_b32 s{sT1}, s2, 3
s_and_b32 s{sB_}, s{sT1}, 3
s_and_b32 s{sT2}, s{sT0}, 1
s_lshl_b32 s{sT2}, s{sT2}, 2
s_add_u32 s{sB_}, s{sB_}, s{sT2}
s_lshr_b32 s{sT1}, s{sT1}, 2
s_lshr_b32 s{sT0}, s{sT0}, 1
s_lshl_b32 s{sH}, s{sT0}, 3
s_add_u32 s{sH}, s{sH}, s{sT1}''')
        self.e(f'''s_lshr_b32 s{sHG}, s{sH}, 3
s_and_b32 s{sHH}, s{sH}, 7
s_and_b32 s{sMH}, s{sHH}, 1
s_lshr_b32 s{sNQ}, s{sHH}, 1''')
        if c.rot:
            if c.mapping == 'A':
                self.e(f's_mov_b32 s{sT0}, s{sH}')
            else:
                self.e(f's_and_b32 s{sT0}, s{sB_}, 3\ns_lshl_b32 s{sT0}, s{sT0}, 1\ns_add_u32 s{sT0}, s{sT0}, s{sHH}')
            self.e(f'''s_mul_i32 s{sT1}, s{sT0}, 57
s_lshr_b32 s{sT1}, s{sT1}, 9
s_mul_i32 s{sT1}, s{sT1}, 9
s_sub_u32 s{sKch}, s{sT0}, s{sT1}''')
        else:
            self.e(f's_mov_b32 s{sKch}, 0')
        L, Q, G, C_, R, T0, T1, T2 = vT+2, vT+3, vT+4, vT+5, vT+6, vT+7, vT+8, vT+9
        self.e(f'''v_lshrrev_b32 v{T0}, 6, v0
v_and_b32 v{L}, 63, v0
v_readfirstlane_b32 s{sW}, v{T0}
v_and_b32 v{Q}, 15, v{L}
v_lshrrev_b32 v{G}, 4, v{L}
v_and_b32 v{C_}, 3, v{L}
v_bfe_u32 v{R}, v{L}, 2, 2
v_lshlrev_b32 v{vL16}, 4, v{L}''')
        e = self.e
        e(f'v_lshrrev_b32 v{T0}, 3, v{L}')
        e(f's_lshl_b32 s{sT0}, s{sW}, 6')
        e(f'v_add_u32 v{T0}, s{sT0}, v{T0}')
        e(f'v_mul_u32_u24 v{T0}, 1152, v{T0}')
        e(f'v_and_b32 v{T1}, 7, v{L}')
        for par in range(2):
            e(f'v_add_u32 v{T2}, {4*par}, v{G}')
            e(f'v_xor_b32 v{T2}, v{T2}, v{T1}')
            e(f'v_lshl_add_u32 v{T2}, v{T2}, 4, v{T0}')
            for i in range(par, 8, 2):
                e(f'v_add_u32 v{vXd+i}, {8*i*1152 - 1024*(i&3)}, v{T2}')
        e(f's_lshl_b32 s{sT0}, s{sW}, 4')
        e(f'v_add_u32 v{T0}, s{sT0}, v{G}')
        e(f'v_lshlrev_b32 v{T0}, 13, v{T0}')
        for hi in range(2):
            e(f'v_lshlrev_b32 v{T2}, 1, v{G}')
            if hi: e(f'v_or_b32 v{T2}, 8, v{T2}')
            e(f'v_xor_b32 v{T2}, v{T2}, v{Q}')
            e(f'v_lshl_add_u32 v{T2}, v{T2}, 4, v{T0}')
            for i in (2*hi, 2*hi+1):
                e(f'v_add_u32 v{vWd+i}, {4*i*8192 - 1024*i}, v{T2}')
        self.lanevars = (L, Q, G, C_, R, T0, T1, T2)
        e('s_waitcnt lgkmcnt(0)')
        e(f'''s_mul_i32 s{sT0}, s{sB_}, 294912
s_add_u32 s{sX}, s4, s{sT0}
s_addc_u32 s{sX+1}, s5, 0
s_mov_b32 s{sX+2}, 294912
s_mov_b32 s{sX+3}, 0x20000
s_lshl_b32 s{sT0}, s{sH}, 8
s_add_u32 s{sWQ}, s10, s{sT0}
s_addc_u32 s{sWQ+1}, s11, 0
s_sub_u32 s{sWQ+2}, 4718592, s{sT0}
s_mov_b32 s{sWQ+3}, 0x20000
s_lshl_b32 s{sXL}, s{sW}, 13
s_lshl_b32 s{sWL}, s{sW}, 12
s_add_u32 s{sWL}, s{sWL}, 32768
s_lshl_b32 s{sXoff}, s{sKch}, 7
s_lshl_b32 s{sWoff}, s{sKch}, 19''')
        for ch in range(3):
            base = LDS_Q0 + 49152*ch
            e(f's_mov_b32 s{sBase}, {base}')
            for x in self.qdma(): e(x)
            for x in self.advance_kch(): e(x)
        e(f's_mov_b32 s{sBase}, {LDS_Q0}')
        self.setup2()

    def advance_kch(self):
        return [f's_add_u32 s{sKch}, s{sKch}, 1', f's_cmp_eq_u32 s{sKch}, 9', f's_cselect_b32 s{sKch}, 0, s{sKch}',
                f's_lshl_b32 s{sXoff}, s{sKch}, 7', f's_lshl_b32 s{sWoff}, s{sKch}, 19']

    def qdma(self):
        o = []
        o.append(f's_add_u32 m0, s{sBase}, s{sXL}')
        o.append('s_nop 0')
        for i in range(4): o.append(f'buffer_load_dwordx4 v{vXd+i}, {sr(sX,4)}, s{sXoff} offen offset:{1024*i} lds')
        o.append('s_add_u32 m0, m0, 4096')
        o.append('s_nop 0')
        for i in range(4, 8): o.append(f'buffer_load_dwordx4 v{vXd+i}, {sr(sX,4)}, s{sXoff} offen offset:{1024*(i&3)} lds')
        o.append(f's_add_u32 m0, s{sBase}, s{sWL}')
        o.append('s_nop 0')
        for i in range(4): o.append(f'buffer_load_dwordx4 v{vWd+i}, {sr(sWQ,4)}, s{sWoff} offen offset:{1024*i} lds')
        return o

    def setup2(self):
        e = self.e; c = self.c
        L, Q, G, C_, R, T0, T1, T2 = self.lanevars
        T3 = vT+10
        e(f'v_and_b32 v{T0}, 7, v{Q}\nv_lshlrev_b32 v{T0}, 1, v{T0}\nv_lshlrev_b32 v{T1}, 8, v{Q}')
        for t in range(4):
            e(f'v_add_u32 v{T2}, {4*t}, v{G}\nv_xor_b32 v{T2}, v{T2}, v{T0}\nv_lshl_add_u32 v{vKr+t}, v{T2}, 4, v{T1}')
        e(f'''v_lshl_add_u32 v{T0}, v{G}, 2, v{R}
v_lshlrev_b32 v{T1}, 8, v{T0}
v_and_b32 v{T0}, 7, v{T0}
v_lshlrev_b32 v{T0}, 1, v{T0}
v_and_b32 v{T2}, 1, v{C_}
v_lshl_add_u32 v{T1}, v{T2}, 3, v{T1}
v_lshrrev_b32 v{T2}, 1, v{C_}
v_xor_b32 v{T0}, v{T0}, v{T2}''')
        for tau in range(8):
            e(f'v_xor_b32 v{T2}, {2*tau}, v{T0}\nv_lshl_add_u32 v{vVr+tau}, v{T2}, 4, v{T1}')
        e(f'v_lshlrev_b32 v{T1}, 8, v{G}')
        for p_ in range(2):
            e(f'v_add_u32 v{T2}, {4*p_}, v{G}\nv_lshlrev_b32 v{T2}, 1, v{T2}\nv_xor_b32 v{T2}, v{T2}, v{Q}\nv_lshl_add_u32 v{vKVd+p_}, v{T2}, 4, v{T1}')
        e(f'''v_lshrrev_b32 v{T0}, 1, v{Q}
v_lshlrev_b32 v{T1}, 7, v{Q}
s_add_u32 s{sT0}, s{sXL}, {LDS_Q0}
v_add_u32 v{T1}, s{sT0}, v{T1}''')
        for ks in range(2):
            e(f'v_add_u32 v{T2}, {4*ks}, v{G}\nv_xor_b32 v{T2}, v{T2}, v{T0}\nv_lshl_add_u32 v{vXr+ks}, v{T2}, 4, v{T1}')
        e(f'''v_lshl_add_u32 v{T0}, v{G}, 3, v{R}
v_lshlrev_b32 v{T1}, 8, v{T0}
v_and_b32 v{T2}, 1, v{C_}
v_lshl_add_u32 v{T1}, v{T2}, 3, v{T1}
v_add_u32 v{T1}, {LDS_Q0+32768}, v{T1}
v_and_b32 v{T0}, 1, v{G}
v_lshl_add_u32 v{T0}, v{T0}, 2, v{R}
v_lshlrev_b32 v{T0}, 1, v{T0}
v_lshrrev_b32 v{T2}, 1, v{C_}
v_xor_b32 v{T0}, v{T0}, v{T2}''')
        for tau in range(8):
            e(f'v_xor_b32 v{T2}, {2*tau}, v{T0}\nv_lshl_add_u32 v{vWr+tau}, v{T2}, 4, v{T1}')
        for i in range(9):
            e(f'''v_add_u32 v{T0}, {64*i}, v{L}
v_mul_u32_u24 v{T1}, 3641, v{T0}
v_lshrrev_b32 v{T1}, 16, v{T1}
v_mul_u32_u24 v{T2}, 18, v{T1}
v_sub_u32 v{T2}, v{T0}, v{T2}
v_mul_u32_u24 v{T1}, 1152, v{T1}
v_lshl_add_u32 v{T1}, v{T2}, 4, v{T1}
v_subrev_u32 v{vWOd+i}, {1024*(i&3)}, v{T1}''')
        e(f'v_lshl_add_u32 v{T0}, v{G}, 2, v{R}\nv_mul_u32_u24 v{T0}, 288, v{T0}\nv_lshl_add_u32 v{vWOr}, v{C_}, 3, v{T0}')
        e(f'v_mov_b32 v{T0}, 0x3f803f80')
        for i in range(4): e(f'v_accvgpr_write_b32 a{aONE+i}, v{T0}')
        e(f'''s_lshl_b32 s{sT0}, s{sB_}, 5
s_add_u32 s{sT0}, s{sT0}, s{sH}
s_lshl_b32 s{sT0}, s{sT0}, 18
s_add_u32 s{sK}, s6, s{sT0}
s_addc_u32 s{sK+1}, s7, 0
s_mov_b32 s{sK+2}, 262144
s_mov_b32 s{sK+3}, 0x20000
s_add_u32 s{sV}, s8, s{sT0}
s_addc_u32 s{sV+1}, s9, 0
s_mov_b32 s{sV+2}, 262144
s_mov_b32 s{sV+3}, 0x20000
s_mov_b32 s{sWO}, s12
s_mov_b32 s{sWO+1}, s13
s_mov_b32 s{sWO+2}, 4718592
s_mov_b32 s{sWO+3}, 0x20000
s_lshl_b32 s{sT0}, s{sB_}, 21
s_add_u32 s{sOW}, s18, s{sT0}
s_addc_u32 s{sOW+1}, s19, 0
s_mov_b32 s{sOW+2}, 0x200000
s_mov_b32 s{sOW+3}, 0x20000
s_lshl_b32 s{sT0}, s{sB_}, 3
s_lshl_b32 s{sT1}, s{sMH}, 2
s_add_u32 s{sT0}, s{sT0}, s{sT1}
s_add_u32 s{sT0}, s{sT0}, s{sNQ}
s_mul_i32 s{sT0}, s{sT0}, {PGRP}
s_add_u32 s{sT0}, s{sT0}, {OFF_P}
s_add_u32 s{sPT}, s18, s{sT0}
s_addc_u32 s{sPT+1}, s19, 0
s_mov_b32 s{sPT+2}, {PGRP}
s_mov_b32 s{sPT+3}, 0x20000
s_mul_i32 s{sT0}, s{sB_}, 294912
s_add_u32 s{sOUT}, s14, s{sT0}
s_addc_u32 s{sOUT+1}, s15, 0
s_mov_b32 s{sOUT+2}, 294912
s_mov_b32 s{sOUT+3}, 0x20000
s_lshl_b32 s{sKVl}, s{sW}, 11
s_mov_b32 s{sKVo}, s{sKVl}
s_mov_b32 s{sScale}, {f32bits(SCALE):#x}
s_mov_b32 s{sScale+1}, {f32bits(SCALE):#x}''')

    def q_reads(self, ks, aX, aW):
        r = []
        xs = [f'ds_read_b128 {ar(aX+4*qb,4)}, v{vXr+ks} offset:{qb*2048}' for qb in range(4)]
        wsr = []
        for tau in range(8):
            for jj in range(2):
                wsr.append(f'ds_read_b64_tr_b16 {ar(aW+4*tau+2*jj,2)}, v{vWr+tau} offset:{ks*8192+jj*1024}')
        return xs + wsr
    def q_mfmas(self, aX, aW, first=False):
        m = []
        for tau in range(8):
            for qb in range(4):
                d = vr(acc(qb, tau), 4)
                m.append(f'v_mfma_f32_16x16x32_bf16 {d}, {ar(aW+4*tau,4)}, {ar(aX+4*qb,4)}, {"0" if first else d}')
        return m
    def kv_dma(self, stage, dyn=False, doK=True, doV=True):
        slot = (stage % 4) * 16384
        nt = ' nt' if self.c.nt else ''
        o = []
        if doK:
            o.append(f's_add_u32 m0, s{sKVl}, {slot}')
            o.append('s_nop 0')
            for p_ in range(2): o.append(f'buffer_load_dwordx4 v{vKVd+p_}, {sr(sK,4)}, s{sKVo} offen offset:{1024*p_}{nt} lds')
        if doV:
            o.append(f's_add_u32 m0, s{sKVl}, {slot+8192}')
            o.append('s_nop 0')
            for p_ in range(2): o.append(f'buffer_load_dwordx4 v{vKVd+p_}, {sr(sV,4)}, s{sVo} offen offset:{1024*p_}{nt} lds')
        o.append(f's_mov_b32 s{sVo}, s{sKVo}')
        o.append(f's_add_u32 s{sKVo}, s{sKVo}, 8192')
        return o
    def k_reads(self, tile):
        slot = (tile % 4) * 16384
        return {(u, t): f'ds_read_b128 {ar(aK+(u*4+t)*4,4)}, v{vKr+t} offset:{slot+4096*u}' for u in range(2) for t in range(4)}
    def v_reads(self, tile):
        slot = ((tile+1) % 4) * 16384 + 8192
        return {(tau, jj): f'ds_read_b64_tr_b16 {ar(aV+tau*4+2*jj,2)}, v{vVr+tau} offset:{slot+4096*jj}' for tau in range(8) for jj in range(2)}

    def q_chunk(self, kind, first=False):
        e = self.e
        e('s_waitcnt lgkmcnt(0)')
        g = {}
        for i, r in enumerate(self.q_reads(1, aXB, aWB)): g.setdefault(i, []).append(r)
        self.stream(self.q_mfmas(aXA, aWA, first=first), g)
        vm = {'q': 12, 'kvA': 12, 'kvB': 10, 'last': 12}[kind]
        e(f's_waitcnt vmcnt({vm}) lgkmcnt(0)')
        e('s_barrier')
        g = {}
        dma = []
        if kind == 'q':
            dma = self.qdma() + self.advance_kch()
        elif kind == 'kvA':
            dma = self.kv_dma(0, doV=False) + self.kv_dma(1) + self.kv_dma(2)
        elif kind == 'kvB':
            dma = self.kv_dma(3)
        if kind != 'last':
            upd = [f'v_add_u32 v{r}, s{sDelta}, v{r}' for r in list(range(vXr, vXr+2)) + list(range(vWr, vWr+8))]
            pre = [f's_mov_b32 s{sDelta}, 49152', f's_cmp_eq_u32 s{sBase}, {LDS_Q0+2*49152}', f's_cselect_b32 s{sDelta}, {(-98304) & 0xffffffff:#x}, s{sDelta}']
            for x in pre: e(x)
            for i, u in enumerate(upd): g.setdefault(i//2, []).append(u)
            for i, r in enumerate(self.q_reads(0, aXA, aWA)): g.setdefault(5 + i, []).append(r)
        else:
            for i, r in enumerate(self.k_reads(0).values()): g.setdefault(2 + i, []).append(r)
        self.spread(g, [x for x in dma if x != 's_nop 0'], 0, 2, 31)
        if kind != 'last':
            g.setdefault(31, []).append(f's_add_u32 s{sBase}, s{sBase}, s{sDelta}')
        self.stream(self.q_mfmas(aXB, aWB), g)

    def q_phase(self):
        e = self.e
        e('s_waitcnt vmcnt(24)')
        e('s_barrier')
        self.stamp()
        for r in self.q_reads(0, aXA, aWA): e(r)
        self.mark('q_first')
        self.q_chunk('q', first=True)
        e(f's_mov_b32 s{sCnt}, 5')
        e('.p2align 4')
        self.p.label('L_q')
        self.mark('q_loop')
        self.q_chunk('q')
        e(f's_sub_u32 s{sCnt}, s{sCnt}, 1\ns_cmp_lg_u32 s{sCnt}, 0\ns_cbranch_scc1 L_q')
        self.mark('q_tail')
        self.q_chunk('kvA')
        self.q_chunk('kvB')
        self.q_chunk('last')
        self.stamp()
        e('s_nop 7')
        for t in range(4):
            for qb in range(4):
                X = acc(qb, 2*t); Y = acc(qb, 2*t+1)
                for r in (X, X+2, Y, Y+2):
                    e(f'v_pk_mul_f32 {vr(r,2)}, {vr(r,2)}, {sr(sScale,2)}')
                T = vT + 4*((qb) % 2)
                e(f'v_cvt_pk_bf16_f32 v{T}, v{X}, v{X+1}')
                e(f'v_cvt_pk_bf16_f32 v{T+1}, v{X+2}, v{X+3}')
                e(f'v_cvt_pk_bf16_f32 v{T+2}, v{Y}, v{Y+1}')
                e(f'v_cvt_pk_bf16_f32 v{T+3}, v{Y+2}, v{Y+3}')
                e('s_nop 0')
                e(f'v_permlane32_swap_b32 v{T}, v{T+2}')
                e(f'v_permlane32_swap_b32 v{T+1}, v{T+3}')
                e('s_nop 0')
                e(f'v_permlane16_swap_b32 v{T}, v{T+2}')
                e(f'v_permlane16_swap_b32 v{T+1}, v{T+3}')
                for i in range(4): e(f'v_accvgpr_write_b32 a{aQ+(qb*4+t)*4+i}, v{T+i}')

    def qk_mfmas(self, qb, sbuf, cinit):
        m = []
        for u in range(2):
            d = vr(sbuf + 4*u, 4)
            for t in range(4):
                cc = cinit if t == 0 else d
                m.append(f'v_mfma_f32_16x16x32_bf16 {d}, {ar(aK+(u*4+t)*4,4)}, {ar(aQ+(qb*4+t)*4,4)}, {cc}')
        return m
    def pv_mfmas(self, qb, pbuf, first):
        m = []
        for tau in range(8):
            d = vr(acc(qb, tau), 4)
            m.append(f'v_mfma_f32_16x16x32_bf16 {d}, {ar(aV+tau*4,4)}, {vr(pbuf,4)}, {"0" if first else d}')
        d = vr(LAC + 4*qb, 4)
        m.append(f'v_mfma_f32_16x16x32_bf16 {d}, {ar(aONE,4)}, {vr(pbuf,4)}, {"0" if first else d}')
        return m
    def unit(self, n, qk=True, sm=True, pv=True, first_pv=False):
        e = self.e
        qb = n % 4; tile = n // 4
        if qb == 0:
            e('s_waitcnt vmcnt(8) lgkmcnt(0)')
            e('s_barrier')
        mf = []
        if qk: mf += self.qk_mfmas(qb, SB + 8*(n % 2), vr(NM + 4*qb, 4))
        npre = len(mf)
        if pv: mf += self.pv_mfmas((n-2) % 4, PB + 4*((n-2) % 2), first_pv)
        N = len(mf)
        g = {}
        def put(i, x): g.setdefault(min(i, N-1), []).append(x)
        if sm:
            s = SB + 8*((n-1) % 2); pb = PB + 4*((n-1) % 2)
            if N >= 17:
                eg = [0, 2, 4, 6, 8, 10, 12, 14]; cg = [3, 7, 11, 15]
            else:
                eg = [0, 1, 2, 3, 4, 5, 6, 6]; cg = [3, 5, 7, 7]
            for i in range(8): put(eg[i], f'v_exp_f32 v{s+i}, v{s+i}')
            for i in range(4): put(cg[i], f'v_cvt_pk_bf16_f32 v{pb+i}, v{s+2*i}, v{s+2*i+1}')
        if qb == 0:
            d = [x for x in self.kv_dma(tile + 4) if x != 's_nop 0']
            if N >= 17:
                put(0, d[0]); put(1, d[1]); put(5, d[2]); put(8, d[3]); put(9, d[4]); put(13, d[5]); put(N-1, d[6]); put(N-1, d[7])
            else:
                put(0, d[0]); put(1, d[1]); put(2, d[2]); put(3, d[3]); put(4, d[4]); put(5, d[5]); put(N-1, d[6]); put(N-1, d[7])
        if qb == 3:
            kr = self.k_reads(tile + 1)
            slots = {(0,0):1, (0,1):1, (0,2):3, (0,3):3, (1,0):5, (1,1):5, (1,2):7, (1,3):9}
            for k, gi in slots.items(): put(gi, kr[k])
        if qb in (1, 2) and pv:
            vrd = self.v_reads(tile)
            if qb == 1:
                pl = {(0,0):9, (0,1):9, (1,0):11, (1,1):11, (2,0):13, (2,1):13, (3,0):15, (3,1):16, (4,0):16}
            else:
                pl = {(4,1):1, (5,0):1, (5,1):3, (6,0):3, (6,1):5, (7,0):5, (7,1):7}
            for k, gi in pl.items(): put(gi, vrd[k])
        self.stream(mf, g)

    def attn_prologue(self):
        e = self.e
        e('s_waitcnt lgkmcnt(0)')
        for qb in range(4):
            d = vr(SB + 4*qb, 4)
            for t in range(4):
                e(f'v_mfma_f32_16x16x32_bf16 {d}, {ar(aK+t*4,4)}, {ar(aQ+(qb*4+t)*4,4)}, {"0" if t == 0 else d}')
        e('s_nop 7')
        for qb in range(4):
            s = SB + 4*qb; T = vT + 2*qb
            e(f'v_max3_f32 v{T}, v{s}, v{s+1}, v{s+2}')
            e(f'v_max_f32 v{T}, v{T}, v{s+3}')
            e(f'v_mov_b32 v{T+1}, v{T}')
        e('s_nop 0')
        for qb in range(4): e(f'v_permlane32_swap_b32 v{vT+2*qb}, v{vT+2*qb+1}')
        for qb in range(4): e(f'v_max_f32 v{vT+2*qb}, v{vT+2*qb}, v{vT+2*qb+1}')
        for qb in range(4): e(f'v_mov_b32 v{vT+2*qb+1}, v{vT+2*qb}')
        e('s_nop 0')
        for qb in range(4): e(f'v_permlane16_swap_b32 v{vT+2*qb}, v{vT+2*qb+1}')
        for qb in range(4): e(f'v_max_f32 v{vT+2*qb}, v{vT+2*qb}, v{vT+2*qb+1}')
        for qb in range(4):
            for i in range(4): e(f'v_sub_f32 v{NM+4*qb+i}, 0, v{vT+2*qb}')
        e('s_nop 1')

    def v_first(self):
        pass

    def attention(self):
        e = self.e
        self.attn_prologue()
        self.stamp()
        self.mark('a_pro')
        self.unit(0, sm=False, pv=False)
        for r in self.v_reads(0).values(): e(r)
        self.unit(1, pv=False)
        e('s_waitcnt lgkmcnt(0)')
        self.unit_w(2, first_pv=True, skipv=True)
        self.unit_w(3, first_pv=True)
        self.unit_w(4, first_pv=True)
        self.unit_w(5, first_pv=True)
        e(f's_mov_b32 s{sCnt}, 8')
        e('.p2align 4')
        self.p.label('L_att')
        self.mark('a_loop')
        for n in range(6, 22):
            self.unit_w(n)
            if n == 17:
                e(f's_sub_u32 s{sCnt}, s{sCnt}, 1\ns_cmp_eq_u32 s{sCnt}, 0\ns_cbranch_scc1 L_att_done')
        e('s_branch L_att')
        self.p.label('L_att_done')
        self.mark('a_done')

    def unit_w(self, n, first_pv=False, skipv=False):
        start = len(self.p.lines)
        if skipv:
            saved = self.v_reads
            self.v_reads = lambda tile: {k: '; skip' for k in saved(tile)}
            self.unit(n, first_pv=first_pv)
            self.v_reads = saved
        else:
            self.unit(n, first_pv=first_pv)

    def publish_o(self):
        e = self.e
        e('s_waitcnt vmcnt(0) lgkmcnt(0)')
        e('s_nop 6')
        e('s_barrier')
        e(f'''s_lshl_b32 s{sT0}, s{sW}, 5
s_lshl_b32 s{sT1}, s{sHG}, 10
s_add_u32 s{sT0}, s{sT0}, s{sT1}
s_mul_i32 s{sT0}, s{sT0}, 1152
s_mul_i32 s{sT1}, s{sNQ}, 288
s_add_u32 s{sWOo}, s{sT0}, s{sT1}''')
        e(f'''s_lshl_b32 s{sT0}, s{sH}, 16
s_lshl_b32 s{sT1}, s{sW}, 14
s_add_u32 s{sOo}, s{sT0}, s{sT1}''')
        for qb in range(4):
            e(f'v_rcp_f32 v{vT+qb}, v{LAC+4*qb}')
        for x in self.wo_dma(0): e(x)
        for qb in range(4):
            R = vT + 4 + 2*(qb % 2)
            e(f'v_mov_b32 v{R}, v{vT+qb}\nv_mov_b32 v{R+1}, v{vT+qb}')
            for t in range(4):
                X = acc(qb, 2*t); Y = acc(qb, 2*t+1)
                for r in (X, X+2, Y, Y+2):
                    e(f'v_pk_mul_f32 {vr(r,2)}, {vr(r,2)}, {vr(R,2)}')
                T = vT + 8 + 4*(t % 4)
                e(f'v_cvt_pk_bf16_f32 v{T}, v{X}, v{X+1}')
                e(f'v_cvt_pk_bf16_f32 v{T+1}, v{X+2}, v{X+3}')
                e(f'v_cvt_pk_bf16_f32 v{T+2}, v{Y}, v{Y+1}')
                e(f'v_cvt_pk_bf16_f32 v{T+3}, v{Y+2}, v{Y+3}')
                e(f's_add_u32 s{sT0}, s{sOo}, {(qb*4+t)*1024}')
                e(f'buffer_store_dwordx4 {vr(T,4)}, v{vL16}, {sr(sOW,4)}, s{sT0} offen sc1')
        for gq in range(1, 4):
            for x in self.wo_dma(gq): e(x)
        e('s_waitcnt vmcnt(27)')
        e('s_barrier')
        self.stamp()
        e(f'''s_lshl_b32 s{sT0}, s{sB_}, 2
s_add_u32 s{sT0}, s{sT0}, s{sHG}
s_lshl_b32 s{sT0}, s{sT0}, 2
v_mov_b32 v{vT}, s{sT0}
v_mov_b32 v{vT+1}, 1
s_cmp_lg_u32 s{sW}, 0
s_cbranch_scc1 L_o_wait_done
s_mov_b64 exec, 1
global_atomic_add v{vT}, v{vT+1}, s[16:17] sc1
s_mov_b32 s{sT2}, 0''')
        self.p.label('L_o_poll')
        e(f'''global_load_dword v{vT+2}, v{vT}, s[16:17] sc1
s_waitcnt vmcnt(0)
v_readfirstlane_b32 s{sT1}, v{vT+2}
s_add_u32 s{sT2}, s{sT2}, 1
s_and_b32 s{sT1}, s{sT1}, 0xff
s_cmp_ge_u32 s{sT1}, 8
s_cbranch_scc1 L_o_poll_done
s_cmp_lt_u32 s{sT2}, 0x40000
s_cbranch_scc0 L_o_poll_done
s_sleep 2
s_branch L_o_poll''')
        self.p.label('L_o_poll_done')
        e('s_mov_b64 exec, -1')
        self.p.label('L_o_wait_done')
        e('s_barrier')
        self.stamp()

    def wo_dma(self, gam):
        o = [f's_add_u32 s{sT2}, s{sHH}, {gam}', f's_and_b32 s{sT2}, s{sT2}, 7', f's_mul_i32 s{sT2}, s{sT2}, {128*1152}',
             f's_add_u32 s{sT2}, s{sT2}, s{sWOo}', f's_mul_i32 s{sT3}, s{sW}, 9216']
        for i in range(9):
            if i % 4 == 0:
                o.append(f's_add_u32 m0, s{sT3}, {G_BASE[gam % 4] + 4096*(i//4)}')
                o.append('s_nop 0')
            o.append(f'buffer_load_dwordx4 v{vWOd+i}, {sr(sWO,4)}, s{sT2} offen offset:{1024*(i%4)} lds')
        return o
    def ob_loads(self, gam):
        o = [f's_add_u32 s{sT2}, s{sHH}, {gam}', f's_and_b32 s{sT2}, s{sT2}, 7', f's_lshl_b32 s{sT3}, s{sHG}, 3',
             f's_add_u32 s{sT2}, s{sT2}, s{sT3}', f's_lshl_b32 s{sT2}, s{sT2}, 16', f's_add_u32 s{sT2}, s{sT2}, s{sOo}']
        for t in range(4):
            for qx in range(2):
                r = aOB + ((gam % 4)*8 + t*2 + qx)*4
                off = qx*4096 + t*1024
                if off < 4096:
                    o.append(f'buffer_load_dwordx4 {ar(r,4)}, v{vL16}, {sr(sOW,4)}, s{sT2} offen offset:{off} sc1')
                else:
                    o.append(f'buffer_load_dwordx4 {ar(r,4)}, v{vT+2}, {sr(sOW,4)}, s{sT2} offen offset:{off-4096} sc1')
        return o

    def o_phase(self):
        e = self.e
        e(f'''s_lshl_b32 s{sT0}, s{sW}, 14
s_lshl_b32 s{sT1}, s{sMH}, 13
s_add_u32 s{sOo}, s{sT0}, s{sT1}
v_add_u32 v{vT+2}, 4096, v{vL16}''')
        for gam in range(4):
            for x in self.ob_loads(gam): e(x)
        for k in range(4): e(f'v_add_u32 v{vT+4+k}, {G_BASE[k]}, v{vWOr}')
        def wreads(gam, t):
            a = vT + 4 + gam % 4
            return [[f'ds_read_b64_tr_b16 {ar(aWO+4*nu+2*jj,2)}, v{a} offset:{t*9216 + jj*4608 + nu*32}' for jj in range(2)] for nu in range(9)]
        e('s_waitcnt vmcnt(32)')
        e('s_barrier')
        for pr in wreads(0, 0):
            for x in pr: e(x)
        vmw = {0: 24, 1: 16, 2: 25, 3: 34, 4: 34, 5: 34, 6: 17, 7: 0}
        self.mark('o_loop')
        for gam in range(8):
            for t in range(4):
                if t == 0:
                    e(f's_waitcnt vmcnt({vmw[gam]})')
                if t == 3 and gam < 7:
                    if gam + 1 >= 4:
                        n_y = {4: 34, 5: 34, 6: 17, 7: 0}[gam+1]
                        e(f's_waitcnt vmcnt({min(63, n_y + 8 - (0))}) lgkmcnt(0)')
                    else:
                        e('s_waitcnt lgkmcnt(0)')
                    e('s_barrier')
                mf = []; g = {}
                nxt = (gam, t+1) if t < 3 else (gam+1, 0)
                wr = wreads(*nxt) if nxt[0] < 8 else None
                for nu in range(9):
                    for qx in range(2):
                        d = vr(OACC + (nu*2+qx)*4, 4)
                        first = (gam == 0 and t == 0)
                        b = aOB + ((gam % 4)*8 + t*2 + qx)*4
                        mf.append(f'v_mfma_f32_16x16x32_bf16 {d}, {ar(aWO+4*nu,4)}, {ar(b,4)}, {"0" if first else d}')
                    if wr:
                        gi = nu*2 + 1
                        g.setdefault(gi, []).append(wr[nu][0])
                        g.setdefault(min(gi+1, 17), []).append(wr[nu][1])
                if 1 <= gam <= 4 and t == 0:
                    lst = [x for x in self.wo_dma(gam+3) if x != 's_nop 0']
                    self._spread(g, lst, 0, 18)
                if 1 <= gam <= 4 and t == 1:
                    lst = self.ob_loads(gam+3)
                    self._spread(g, lst, 0, 18)
                self.owait = True
                e('s_waitcnt lgkmcnt(%d)' % 15 if False else '; chunk')
                self._emit_with_lgkm(mf, g)
        self.stamp()

    def _spread(self, g, lst, lo, hi):
        self.spread(g, lst, lo, 1, hi-1)
    def spread(self, g, lst, lo, step, last):
        gi = lo
        prev_m0 = False
        for x in lst:
            if x.startswith('buffer_load'):
                if prev_m0: gi += 1
                assert gi <= last, (gi, last, x)
                g.setdefault(gi, []).append(x)
                gi += step
                prev_m0 = False
            else:
                gg = min(gi, last)
                g.setdefault(gg, []).append(x)
                if ' m0,' in x: prev_m0 = True

    def _emit_with_lgkm(self, mf, g):
        self.stream(mf, g)

    def final(self):
        e = self.e
        e('s_nop 7')
        e(f'''s_lshl_b32 s{sT0}, s{sHG}, 2
s_add_u32 s{sT0}, s{sT0}, s{sW}
s_mul_i32 s{sT0}, s{sT0}, 18432''')
        for qx in range(2):
            for nu in range(9):
                r = OACC + (nu*2+qx)*4
                off = (qx*9 + nu)*1024
                e(f's_add_u32 s{sT1}, s{sT0}, {off}')
                e(f'buffer_store_dwordx4 {vr(r,4)}, v{vL16}, {sr(sPT,4)}, s{sT1} offen sc1')
        e('s_waitcnt vmcnt(0)')
        e('s_barrier')
        self.stamp()
        e(f'''s_lshl_b32 s{sT0}, s{sB_}, 2
s_add_u32 s{sT0}, s{sT0}, s{sNQ}
s_add_u32 s{sT0}, s{sT0}, 32
s_lshl_b32 s{sT0}, s{sT0}, 2
s_lshl_b32 s{sT3}, s{sMH}, 4
s_lshl_b32 s{sT1}, 1, s{sT3}
v_mov_b32 v{vT}, s{sT0}
v_mov_b32 v{vT+1}, s{sT1}
s_cmp_lg_u32 s{sW}, 0
s_cbranch_scc1 L_p_wait_done
s_mov_b64 exec, 1
global_atomic_add v{vT}, v{vT+1}, s[16:17] sc1
s_mov_b32 s{sT2}, 0''')
        self.p.label('L_p_poll')
        e(f'''global_load_dword v{vT+2}, v{vT}, s[16:17] sc1
s_waitcnt vmcnt(0)
v_readfirstlane_b32 s{sT1}, v{vT+2}
s_add_u32 s{sT2}, s{sT2}, 1
s_lshr_b32 s{sT1}, s{sT1}, s{sT3}
s_and_b32 s{sT1}, s{sT1}, 0xff
s_cmp_ge_u32 s{sT1}, 4
s_cbranch_scc1 L_p_poll_done
s_cmp_lt_u32 s{sT2}, 0x40000
s_cbranch_scc0 L_p_poll_done
s_sleep 2
s_branch L_p_poll''')
        self.p.label('L_p_poll_done')
        e('s_mov_b64 exec, -1')
        self.p.label('L_p_wait_done')
        e('s_barrier')
        self.stamp()
        e(f'''s_and_b32 s{sT0}, s{sHG}, 1
s_lshr_b32 s{sT1}, s{sHG}, 1
s_mul_i32 s{sT2}, s{sT0}, 9
s_mul_i32 s{sT3}, s{sT1}, 5
s_add_u32 s{sT2}, s{sT2}, s{sT3}
s_lshl_b32 s{sT2}, s{sT2}, 10
s_mul_i32 s{sT3}, s{sW}, 18432
s_add_u32 s{sT2}, s{sT2}, s{sT3}''')
        for src in range(4):
            for k in range(5):
                r = (src*5 + k)*4
                e(f's_add_u32 s{sT3}, s{sT2}, {src*4*18432 + k*1024}')
                e(f'buffer_load_dwordx4 {vr(r,4)}, v{vL16}, {sr(sPT,4)}, s{sT3} offen sc1')
        T = vT
        e(f'''v_bfe_u32 v{T}, v{vL16}, 4, 4
v_lshrrev_b32 v{T+1}, 8, v{vL16}
s_lshl_b32 s{sT3}, s{sW}, 6
s_lshl_b32 s{sCnt}, s{sMH}, 5
s_add_u32 s{sT3}, s{sT3}, s{sCnt}
s_lshl_b32 s{sCnt}, s{sT0}, 4
s_add_u32 s{sT3}, s{sT3}, s{sCnt}
v_add_u32 v{T}, s{sT3}, v{T}
v_mul_u32_u24 v{T}, 1152, v{T}
v_lshl_add_u32 v{T}, v{T+1}, 3, v{T}
s_mul_i32 s{sT3}, s{sNQ}, 288
s_mul_i32 s{sCnt}, s{sT1}, 160
s_add_u32 s{sT3}, s{sT3}, s{sCnt}''')
        e('s_waitcnt vmcnt(0)')
        for k in range(5):
            for i in range(4):
                r = k*4 + i
                e(f'v_add_f32 v{r}, v{r}, v{20+r}')
                e(f'v_add_f32 v{40+r}, v{40+r}, v{60+r}')
            for i in range(4):
                r = k*4 + i
                e(f'v_add_f32 v{r}, v{r}, v{40+r}')
            e(f'v_cvt_pk_bf16_f32 v{80+2*k}, v{k*4}, v{k*4+1}')
            e(f'v_cvt_pk_bf16_f32 v{80+2*k+1}, v{k*4+2}, v{k*4+3}')
            if k == 4:
                e(f's_cmp_lg_u32 s{sT1}, 0\ns_cbranch_scc1 L_fin')
            e(f'buffer_store_dwordx2 {vr(80+2*k,2)}, v{T}, {sr(sOUT,4)}, s{sT3} offen offset:{32*k}')

    def write_stamps(self):
        if not self.c.stamps: return
        n = self.nstamp
        return n

    def dump_q(self):
        e = self.e
        e(f'''s_lshl_b32 s{sT0}, s{sH}, 16
s_lshl_b32 s{sT1}, s{sW}, 14
s_add_u32 s{sT0}, s{sT0}, s{sT1}''')
        for f in range(16):
            e(f's_add_u32 s{sT1}, s{sT0}, {f*1024}')
            e(f'buffer_store_dwordx4 {ar(aQ+4*f,4)}, v{vL16}, {sr(sOW,4)}, s{sT1} offen')
        e('s_waitcnt vmcnt(0)')

    def build(self):
        c = self.c
        self.setup()
        self.q_phase()
        if c.stop == 'q':
            self.e('s_nop 4'); self.dump_q()
        else:
            self.attention()
            self.stamp()
            self.publish_o()
            if c.stop != 'attn':
                self.o_phase()
                self.final()
        self.p.label('L_fin')
        if c.stamps:
            self.stamp()
            e = self.e
            n = self.nstamp
            e('s_waitcnt lgkmcnt(0) vmcnt(0)')
            e(f's_mul_i32 s{sT0}, s2, {8*16}\ns_add_u32 s{sT0}, s{sT0}, 0x0F000000\nv_mov_b32 v{vT}, s{sT0}')
            e(f's_cmp_lg_u32 s{sW}, 0\ns_cbranch_scc1 L_end\ns_mov_b64 exec, 1')
            for i in range(n):
                e(f'v_mov_b32 v{vT+2}, s{sStamp+2*i}\nv_mov_b32 v{vT+3}, s{sStamp+2*i+1}\nglobal_store_dwordx2 v{vT}, {vr(vT+2,2)}, s[18:19] offset:{8*i}\ns_nop 1')
        self.p.label('L_end')
        self.e('s_endpgm')
        return self.finish()

    def finish(self):
        lines = insert_lgkm_waits(self.p.lines, self.blocks)
        body = '\n'.join(lines)
        hdr = f'''; fused q-proj + attention + o-proj (generated by my gen.py)
; @launch grid=(256,1,1) block=(256,1,1) lds=163840
.amdgcn_target "amdgcn-amd-amdhsa--gfx950"
.text
.globl {KN}
.p2align 8
.type {KN},@function
{KN}:
'''
        ftr = f'''
L_code_end:
.section .rodata,"a"
.p2align 6
.amdhsa_kernel {KN}
  .amdhsa_next_free_vgpr 512
  .amdhsa_next_free_sgpr 102
  .amdhsa_accum_offset 256
  .amdhsa_group_segment_fixed_size 0
  .amdhsa_kernarg_size 64
  .amdhsa_user_sgpr_count 2
  .amdhsa_user_sgpr_kernarg_segment_ptr 1
  .amdhsa_system_sgpr_workgroup_id_x 1
.end_amdhsa_kernel
'''
        return hdr, body, ftr

def insert_lgkm_waits(lines, blocks):
    labels = {l[:-1]: i for i, l in enumerate(lines) if l.endswith(':')}
    loops = []
    for i, l in enumerate(lines):
        t = l.strip().split()
        if t and (t[0].startswith('s_cbranch') or t[0] == 's_branch') and t[1] in labels and labels[t[1]] < i and t[1] in ('L_q', 'L_att'):
            loops.append((labels[t[1]], i))
    trace = []
    i = 0
    loopd = {a: b for a, b in loops}
    while i < len(lines):
        if i in loopd:
            b = loopd[i]
            trace += list(range(i, b+1)) * 2
            i = b + 1
        else:
            trace.append(i); i += 1
    need = {}
    q = []
    for li in trace:
        I = parse(lines[li])
        if I is None: continue
        if I.op == 's_waitcnt':
            for tok in I.ops:
                if tok.startswith('lgkmcnt'):
                    n = int(tok[8:-1]); q = q[len(q)-n:] if n < len(q) else q
                    if n == 0: q = []
            continue
        touched = set(I.r + I.srcC + (I.w if I.cls not in ('dsr',) else []))
        k = None
        for idx, regs in enumerate(q):
            if regs & touched: k = idx
        if I.cls == 'dsr':
            for idx, regs in enumerate(q):
                if regs & set(I.w): k = idx if k is None else max(k, idx)
        if k is not None:
            n = len(q) - 1 - k
            n = min(n, 15)
            need[li] = min(need.get(li, 99), n)
            q = q[len(q)-n:] if n > 0 else []
        if I.cls == 'dsr': q.append(set(I.w))
        elif I.cls == 'dsw': q.append(set())
        elif I.cls == 'smem': pass
    out = []
    for i, l in enumerate(lines):
        if i in need: out.append(f'  s_waitcnt lgkmcnt({need[i]})')
        out.append(l)
    return out

def main():
    import argparse
    ap = argparse.ArgumentParser()
    ap.add_argument('-o', default='standalone__mha_block_cached__near_ridge.s')
    ap.add_argument('--mapping', default='m48')
    ap.add_argument('--stamps', action='store_true')
    ap.add_argument('--stop', default=None)
    ap.add_argument('--norot', action='store_true')
    ap.add_argument('--nopf', action='store_true')
    a = ap.parse_args()
    c = Cfg(); c.mapping = a.mapping; c.stamps = a.stamps; c.stop = a.stop; c.rot = not a.norot; c.prefetch_code = not a.nopf
    g = Gen(c)
    hdr, body, ftr = g.build()
    lines = body.split('\n')
    if c.prefetch_code:
        est = assemble_size(hdr, body.replace('; PFCODE', ''), ftr)
        n = max(0, (est - 64) // 4096)
        magic = (65536 + n - 1) // n
        pf = [f'  s_mul_i32 s{sT3}, s{sT2}, {magic}', f'  s_lshr_b32 s{sT3}, s{sT3}, 16', f'  s_mul_i32 s{sT3}, s{sT3}, {n}',
              f'  s_sub_u32 s{sT2}, s{sT2}, s{sT3}', f'  s_lshl_b32 s{sT2}, s{sT2}, 12', f'  v_add_u32 v{vT}, s{sT2}, v{vT}',
              f'  global_load_dwordx4 {vr(vT+20,4)}, v{vT}, s[100:101]']
        assert all(((v*magic) >> 16) == v//n for v in range(33))
        body = body.replace('; PFCODE', '\n'.join(pf))
    open(a.o, 'w').write(hdr + body + ftr)
    run_checks(body.split('\n'))
    print('wrote', a.o, 'code bytes ~', assemble_size(hdr, body, ftr), 'stamps', g.nstamp)

def assemble_size(hdr, body, ftr):
    import subprocess, tempfile, os
    with tempfile.TemporaryDirectory() as d:
        s = os.path.join(d, 'k.s'); o = os.path.join(d, 'k.o')
        open(s, 'w').write(hdr + body + ftr)
        r = subprocess.run(['clang', '-x', 'assembler', '-target', 'amdgcn-amd-amdhsa', '-mcpu=gfx950', '-c', s, '-o', o], capture_output=True, text=True)
        if r.returncode: print(r.stderr[:3000]); sys.exit(1)
        r = subprocess.run(['llvm-readelf', '-S', o], capture_output=True, text=True)
        for ln in r.stdout.split('\n'):
            if ' .text ' in ln:
                f = ln.split()
                k = f.index('PROGBITS')
                return int(f[k+3], 16)
    return 0

def run_checks(lines):
    labels = {l[:-1]: i for i, l in enumerate(lines) if l.endswith(':')}
    trace = []
    i = 0
    loops = {}
    for j, l in enumerate(lines):
        t = l.strip().split()
        if t and (t[0].startswith('s_cbranch') or t[0] == 's_branch') and len(t) > 1 and t[1] in ('L_q', 'L_att') and labels[t[1]] < j:
            loops[labels[t[1]]] = j
    while i < len(lines):
        if i in loops:
            b = loops[i]
            trace += lines[i:b+1] * 2
            if lines[i].startswith('L_att:'):
                for k in range(i, b+1):
                    trace.append(lines[k])
                    if 'L_att_done' in lines[k]: break
            i = b + 1
        else:
            trace.append(lines[i]); i += 1
    check_trace(trace, 'kernel')

main()
```

```python
import sys, math, struct, re
sys.path.insert(0, 'gen')
from asmlib import *

KN = 'standalone__mha_block_cached__near_ridge_kernel'

class Cfg:
    mapping = 'm48'; stamps = False; cyc = False; stop = None; rot = True; nt = True; prefetch_code = True
    qflags = ''; st_flags = 'sc1'; ld_flags = 'sc1'; wo_flags = ''; xstamps = False; warm_wo = True; fakeq = False; abl = ''; out_flags = ''

ACC = 0; LAC = 128; SB = 144; PB = 160; NM = 168
vKr = 184; vVr = 188; vKVd = 196; vWOd = 198; vWOr = 207; vL16 = 208
vXd = 209; vWd = 217; vXr = 221; vWr = 223
vNON = 232
vT = 234
aQ = 0; aK = 64; aV = 96; aONE = 128
aXA, aWA = 132, 148
aXB, aWB = 180, 196
aOB = 0; aWO = 128
OACC = 0
sX, sWQ, sK, sV, sWO, sOW, sPT, sOUT = 20, 24, 28, 32, 36, 40, 44, 48
sB_, sH, sW, sHG, sHH, sMH, sNQ = 52, 53, 54, 55, 56, 57, 58
sXoff, sWoff, sBase, sDelta, sKch, sCnt = 59, 60, 61, 62, 63, 64
sXL, sWL = 65, 66
sKVo, sKVl, sVo = 67, 68, 69
sT0, sT1, sT2, sT3 = 70, 71, 72, 73
sScale = 74
sWOo, sOo = 76, 77
sStamp = 78
sWOs, sWOm = 4, 5
sPrevB = 62
sPB = 3

OFF_P = 0x1100000
PGRP = 4*4*18*1024
FLG_O = 0x2800000
FLG_P = 0x2810000
DUMMY_LDS = 73728
LDS_Q0 = 16384
G_BASE = [90112, 126976, 0, 36864]
SCALE = math.log2(math.e) / math.sqrt(128.0)
def f32bits(x): return struct.unpack('<I', struct.pack('<f', x))[0]
def acc(qb, tau): return ACC + (qb*8 + tau)*4

class Gen:
    def __init__(self, cfg):
        self.c = cfg; self.p = Prog(); self.nstamp = 0; self.fake_tags = []
    def e(self, s): self.p.e(s)
    def stamp(self):
        if not self.c.stamps: return
        i = self.nstamp; self.nstamp += 1
        assert sStamp + 2*i + 1 < 102
        self.e(f'{"s_memtime" if self.c.cyc else "s_memrealtime"} {sr(sStamp+2*i,2)}')
    def stream(self, mfmas, gaps):
        for i, m in enumerate(mfmas):
            self.e(m)
            fl = gaps.get(i, [])
            nonv = [x for x in fl if not x.lstrip().startswith('v_')]
            val = [x for x in fl if x.lstrip().startswith('v_')]
            for x in nonv + val: self.e(x)
        extra = [k for k in gaps if k >= len(mfmas) or k < 0]
        assert not extra, extra
    def spread(self, g, lst, lo, step, last):
        gi = lo; prev_m0 = False
        for x in lst:
            if x.startswith('buffer_load'):
                if prev_m0: gi += 1
                assert gi <= last, (gi, last, x)
                g.setdefault(gi, []).append(x)
                gi += step; prev_m0 = False
            else:
                g.setdefault(min(gi, last), []).append(x)
                if ' m0,' in x: prev_m0 = True
    def vmwait(self, tag, extra=''):
        self.e(f's_waitcnt vmcnt(@{tag}@){extra}')

    def setup(self):
        c = self.c; e = self.e
        e('s_cmp_ge_u32 s2, 256\ns_cbranch_scc1 L_end\ns_load_dwordx16 s[4:19], s[0:1], 0')
        self.stamp()
        if c.prefetch_code:
            e('s_getpc_b64 s[100:101]')
            e(f'v_lshlrev_b32 v{vT}, 4, v0')
            e(f's_lshr_b32 s{sT2}, s2, 3')
            e('; PFCODE')
        if c.mapping == 'A':
            e(f's_and_b32 s{sB_}, s2, 7\ns_lshr_b32 s{sH}, s2, 3')
        else:
            e(f'''s_and_b32 s{sT0}, s2, 7
s_lshr_b32 s{sT1}, s2, 3
s_and_b32 s{sB_}, s{sT1}, 3
s_and_b32 s{sT2}, s{sT0}, 1
s_lshl_b32 s{sT2}, s{sT2}, 2
s_add_u32 s{sB_}, s{sB_}, s{sT2}
s_lshr_b32 s{sT1}, s{sT1}, 2
s_lshr_b32 s{sT0}, s{sT0}, 1
s_lshl_b32 s{sH}, s{sT0}, 3
s_add_u32 s{sH}, s{sH}, s{sT1}''')
        e(f'''s_lshr_b32 s{sHG}, s{sH}, 3
s_and_b32 s{sHH}, s{sH}, 7
s_and_b32 s{sMH}, s{sHH}, 1
s_lshr_b32 s{sNQ}, s{sHH}, 1''')
        if c.rot:
            if c.mapping == 'A':
                e(f's_mov_b32 s{sT0}, s{sH}')
            else:
                e(f's_and_b32 s{sT0}, s{sB_}, 3\ns_lshl_b32 s{sT0}, s{sT0}, 1\ns_add_u32 s{sT0}, s{sT0}, s{sHH}')
            e(f'''s_mul_i32 s{sT1}, s{sT0}, 57
s_lshr_b32 s{sT1}, s{sT1}, 9
s_mul_i32 s{sT1}, s{sT1}, 9
s_sub_u32 s{sKch}, s{sT0}, s{sT1}''')
        else:
            e(f's_mov_b32 s{sKch}, 0')
        L, Q, G, C_, R, T0, T1, T2 = vT+2, vT+3, vT+4, vT+5, vT+6, vT+7, vT+8, vT+9
        self.lanevars = (L, Q, G, C_, R, T0, T1, T2)
        e(f'''v_lshrrev_b32 v{T0}, 6, v0
v_and_b32 v{L}, 63, v0
v_readfirstlane_b32 s{sW}, v{T0}
v_and_b32 v{Q}, 15, v{L}
v_lshrrev_b32 v{G}, 4, v{L}
v_and_b32 v{C_}, 3, v{L}
v_bfe_u32 v{R}, v{L}, 2, 2
v_lshlrev_b32 v{vL16}, 4, v{L}''')
        e(f'v_lshrrev_b32 v{T0}, 3, v{L}')
        e(f's_lshl_b32 s{sT0}, s{sW}, 6')
        e(f'v_add_u32 v{T0}, s{sT0}, v{T0}')
        e(f'v_mul_u32_u24 v{T0}, 1152, v{T0}')
        e(f'v_and_b32 v{T1}, 7, v{L}')
        for par in range(2):
            e(f'v_add_u32 v{T2}, {4*par}, v{G}')
            e(f'v_xor_b32 v{T2}, v{T2}, v{T1}')
            e(f'v_lshl_add_u32 v{T2}, v{T2}, 4, v{T0}')
            for i in range(par, 8, 2):
                e(f'v_add_u32 v{vXd+i}, {8*i*1152 - 1024*(i&3)}, v{T2}')
        e(f's_lshl_b32 s{sT0}, s{sW}, 4')
        e(f'v_add_u32 v{T0}, s{sT0}, v{G}')
        e(f'v_lshlrev_b32 v{T0}, 13, v{T0}')
        for hi in range(2):
            e(f'v_lshlrev_b32 v{T2}, 1, v{G}')
            if hi: e(f'v_or_b32 v{T2}, 8, v{T2}')
            e(f'v_xor_b32 v{T2}, v{T2}, v{Q}')
            e(f'v_lshl_add_u32 v{T2}, v{T2}, 4, v{T0}')
            for i in (2*hi, 2*hi+1):
                e(f'v_add_u32 v{vWd+i}, {4*i*8192 - 1024*i}, v{T2}')
        e('s_waitcnt lgkmcnt(0)')
        if c.xstamps: self.stamp()
        e(f'''s_mul_i32 s{sT0}, s{sB_}, 294912
s_add_u32 s{sX}, s4, s{sT0}
s_addc_u32 s{sX+1}, s5, 0
s_mov_b32 s{sX+2}, 294912
s_mov_b32 s{sX+3}, 0x20000
s_lshl_b32 s{sT0}, s{sH}, 8
s_add_u32 s{sWQ}, s10, s{sT0}
s_addc_u32 s{sWQ+1}, s11, 0
s_sub_u32 s{sWQ+2}, 4718592, s{sT0}
s_mov_b32 s{sWQ+3}, 0x20000
s_lshl_b32 s{sXL}, s{sW}, 13
s_lshl_b32 s{sWL}, s{sW}, 12
s_add_u32 s{sWL}, s{sWL}, 32768
s_lshl_b32 s{sXoff}, s{sKch}, 7
s_lshl_b32 s{sWoff}, s{sKch}, 19''')
        if c.fakeq:
            e(f's_mov_b32 s{sX}, s4\ns_mov_b32 s{sX+1}, s5\ns_mov_b32 s{sWQ}, s10\ns_mov_b32 s{sWQ+1}, s11\ns_mov_b32 s{sXoff}, 0\ns_mov_b32 s{sWoff}, 0')
        e(f's_mov_b32 s{sBase}, {LDS_Q0}')
        for x in self.qdma('q0'): e(x)
        for x in self.advance_kch(): e(x)
        if c.xstamps: self.stamp()
        e(f'''s_cmp_lg_u32 s{sW}, 0
s_cbranch_scc1 L_nonce_done
s_memrealtime s[{sT0}:{sT1}]
v_mov_b32 v{vT+12}, 0
v_mov_b32 v{vT+16}, 0
v_mov_b32 v{vT+17}, 0
s_waitcnt lgkmcnt(0)
s_or_b32 s{sT0}, s{sT0}, 1
v_mov_b32 v{vT+14}, s{sT0}
v_mov_b32 v{vT+15}, s{sT1}
s_mov_b64 exec, 1
global_atomic_cmpswap_x2 {vr(vNON,2)}, v{vT+12}, {vr(vT+14,4)}, s[16:17] sc0 sc1 ;@x
s_mov_b64 exec, -1
s_mov_b32 s{sPB}, s{sT0}
s_mov_b32 s{sDelta}, s{sT1}''')
        self.p.label('L_nonce_done')
        self.setup2()
        if c.xstamps: self.stamp()
        e(f's_mov_b32 s{sBase}, {LDS_Q0+49152}')
        for x in self.qdma('q1'): e(x)
        for x in self.advance_kch(): e(x)

    def advance_kch(self):
        if self.c.fakeq: return ['s_nop 0']
        return [f's_add_u32 s{sKch}, s{sKch}, 1', f's_cmp_eq_u32 s{sKch}, 9', f's_cselect_b32 s{sKch}, 0, s{sKch}',
                f's_lshl_b32 s{sXoff}, s{sKch}, 7', f's_lshl_b32 s{sWoff}, s{sKch}, 19']

    def qdma(self, tag, base=None, half=None):
        b = sBase if base is None else base
        fl = self.c.qflags
        o = []
        xs = range(8) if half is None else (range(6) if half == 0 else range(6, 8))
        cur = None
        for i in xs:
            if cur != i >> 2:
                cur = i >> 2
                if cur == 0: o.append(f's_add_u32 m0, s{b}, s{sXL}')
                elif i == 4: o.append('s_add_u32 m0, m0, 4096')
                else:
                    o.append(f's_add_u32 s{sT0}, s{b}, s{sXL}'); o.append(f's_add_u32 m0, s{sT0}, 4096')
                o.append('s_nop 0')
            o.append(f'buffer_load_dwordx4 v{vXd+i}, {sr(sX,4)}, s{sXoff} offen offset:{1024*(i&3)} {fl} lds ;@{tag}')
        if half != 0:
            o.append(f's_add_u32 m0, s{b}, s{sWL}')
            o.append('s_nop 0')
            for i in range(4): o.append(f'buffer_load_dwordx4 v{vWd+i}, {sr(sWQ,4)}, s{sWoff} offen offset:{1024*i} {fl} lds ;@{tag}')
        return o

    def setup2(self):
        e = self.e
        L, Q, G, C_, R, T0, T1, T2 = self.lanevars
        e(f'v_and_b32 v{T0}, 7, v{Q}\nv_lshlrev_b32 v{T0}, 1, v{T0}\nv_lshlrev_b32 v{T1}, 8, v{Q}')
        for t in range(4):
            e(f'v_add_u32 v{T2}, {4*t}, v{G}\nv_xor_b32 v{T2}, v{T2}, v{T0}\nv_lshl_add_u32 v{vKr+t}, v{T2}, 4, v{T1}')
        e(f'''v_lshl_add_u32 v{T0}, v{G}, 2, v{R}
v_lshlrev_b32 v{T1}, 8, v{T0}
v_and_b32 v{T0}, 7, v{T0}
v_lshlrev_b32 v{T0}, 1, v{T0}
v_and_b32 v{T2}, 1, v{C_}
v_lshl_add_u32 v{T1}, v{T2}, 3, v{T1}
v_lshrrev_b32 v{T2}, 1, v{C_}
v_xor_b32 v{T0}, v{T0}, v{T2}''')
        for tau in range(8):
            e(f'v_xor_b32 v{T2}, {2*tau}, v{T0}\nv_lshl_add_u32 v{vVr+tau}, v{T2}, 4, v{T1}')
        e(f'v_lshlrev_b32 v{T1}, 8, v{G}')
        for p_ in range(2):
            e(f'v_add_u32 v{T2}, {4*p_}, v{G}\nv_lshlrev_b32 v{T2}, 1, v{T2}\nv_xor_b32 v{T2}, v{T2}, v{Q}\nv_lshl_add_u32 v{vKVd+p_}, v{T2}, 4, v{T1}')
        e(f'''v_lshrrev_b32 v{T0}, 1, v{Q}
v_lshlrev_b32 v{T1}, 7, v{Q}
s_add_u32 s{sT0}, s{sXL}, {LDS_Q0}
v_add_u32 v{T1}, s{sT0}, v{T1}''')
        for ks in range(2):
            e(f'v_add_u32 v{T2}, {4*ks}, v{G}\nv_xor_b32 v{T2}, v{T2}, v{T0}\nv_lshl_add_u32 v{vXr+ks}, v{T2}, 4, v{T1}')
        e(f'''v_lshl_add_u32 v{T0}, v{G}, 3, v{R}
v_lshlrev_b32 v{T1}, 8, v{T0}
v_and_b32 v{T2}, 1, v{C_}
v_lshl_add_u32 v{T1}, v{T2}, 3, v{T1}
v_add_u32 v{T1}, {LDS_Q0+32768}, v{T1}
v_and_b32 v{T0}, 1, v{G}
v_lshl_add_u32 v{T0}, v{T0}, 2, v{R}
v_lshlrev_b32 v{T0}, 1, v{T0}
v_lshrrev_b32 v{T2}, 1, v{C_}
v_xor_b32 v{T0}, v{T0}, v{T2}''')
        for tau in range(8):
            e(f'v_xor_b32 v{T2}, {2*tau}, v{T0}\nv_lshl_add_u32 v{vWr+tau}, v{T2}, 4, v{T1}')
        for i in range(9):
            e(f'''v_add_u32 v{T0}, {64*i}, v{L}
v_mul_u32_u24 v{T1}, 3641, v{T0}
v_lshrrev_b32 v{T1}, 16, v{T1}
v_mul_u32_u24 v{T2}, 18, v{T1}
v_sub_u32 v{T2}, v{T0}, v{T2}
v_mul_u32_u24 v{T1}, 1152, v{T1}
v_lshl_add_u32 v{T1}, v{T2}, 4, v{T1}
v_subrev_u32 v{vWOd+i}, {1024*(i%3)}, v{T1}''')
        e(f'v_lshl_add_u32 v{T0}, v{G}, 2, v{R}\nv_mul_u32_u24 v{T0}, 288, v{T0}\nv_lshl_add_u32 v{vWOr}, v{C_}, 3, v{T0}')
        e(f'v_mov_b32 v{T0}, 0x3f803f80')
        for i in range(4): e(f'v_accvgpr_write_b32 a{aONE+i}, v{T0}')
        e(f'''s_lshl_b32 s{sT0}, s{sB_}, 5
s_add_u32 s{sT0}, s{sT0}, s{sH}
s_lshl_b32 s{sT0}, s{sT0}, 18
s_add_u32 s{sK}, s6, s{sT0}
s_addc_u32 s{sK+1}, s7, 0
s_mov_b32 s{sK+2}, 262144
s_mov_b32 s{sK+3}, 0x20000
s_add_u32 s{sV}, s8, s{sT0}
s_addc_u32 s{sV+1}, s9, 0
s_mov_b32 s{sV+2}, 262144
s_mov_b32 s{sV+3}, 0x20000
s_mov_b32 s{sWO}, s12
s_mov_b32 s{sWO+1}, s13
s_mov_b32 s{sWO+2}, 4718592
s_mov_b32 s{sWO+3}, 0x20000
s_lshl_b32 s{sT0}, s{sB_}, 21
s_add_u32 s{sOW}, s18, s{sT0}
s_addc_u32 s{sOW+1}, s19, 0
s_mov_b32 s{sOW+2}, 0x200000
s_mov_b32 s{sOW+3}, 0x20000
s_lshl_b32 s{sT0}, s{sB_}, 3
s_lshl_b32 s{sT1}, s{sMH}, 2
s_add_u32 s{sT0}, s{sT0}, s{sT1}
s_add_u32 s{sT0}, s{sT0}, s{sNQ}
s_mul_i32 s{sT0}, s{sT0}, {PGRP}
s_add_u32 s{sT0}, s{sT0}, {OFF_P}
s_add_u32 s{sPT}, s18, s{sT0}
s_addc_u32 s{sPT+1}, s19, 0
s_mov_b32 s{sPT+2}, {PGRP}
s_mov_b32 s{sPT+3}, 0x20000
s_mul_i32 s{sT0}, s{sB_}, 294912
s_add_u32 s{sOUT}, s14, s{sT0}
s_addc_u32 s{sOUT+1}, s15, 0
s_mov_b32 s{sOUT+2}, 294912
s_mov_b32 s{sOUT+3}, 0x20000
s_lshl_b32 s{sKVl}, s{sW}, 11
s_mov_b32 s{sKVo}, s{sKVl}
s_mov_b32 s{sScale}, {f32bits(SCALE):#x}
s_mov_b32 s{sScale+1}, {f32bits(SCALE):#x}
s_lshl_b32 s{sT0}, s{sW}, 5
s_lshl_b32 s{sT1}, s{sHG}, 10
s_add_u32 s{sT0}, s{sT0}, s{sT1}
s_mul_i32 s{sT0}, s{sT0}, 1152
s_mul_i32 s{sT1}, s{sNQ}, 288
s_add_u32 s{sWOo}, s{sT0}, s{sT1}''')

    def q_reads(self, ks, aX, aW):
        xs = [f'ds_read_b128 {ar(aX+4*qb,4)}, v{vXr+ks} offset:{qb*2048}' for qb in range(4)]
        ws_ = [f'ds_read_b64_tr_b16 {ar(aW+4*tau+2*jj,2)}, v{vWr+tau} offset:{ks*8192+jj*1024}' for tau in range(8) for jj in range(2)]
        return [xs[0], ws_[0], ws_[1]] + xs[1:] + ws_[2:]
    def q_mfmas(self, aX, aW, first=False):
        m = []
        for tau in range(8):
            for qb in range(4):
                d = vr(acc(qb, tau), 4)
                m.append(f'v_mfma_f32_16x16x32_bf16 {d}, {ar(aW+4*tau,4)}, {ar(aX+4*qb,4)}, {"0" if first else d}')
        return m
    def kv_dma(self, stage, doK=True, doV=True):
        slot = (stage % 4) * 16384
        nt = ' nt' if self.c.nt else ''
        tag = f'st{stage % 4}'
        o = []
        if doK:
            o.append(f's_add_u32 m0, s{sKVl}, {slot}'); o.append('s_nop 0')
            for p_ in range(2): o.append(f'buffer_load_dwordx4 v{vKVd+p_}, {sr(sK,4)}, s{sKVo} offen offset:{1024*p_}{nt} lds ;@{tag}')
        if doV:
            o.append(f's_add_u32 m0, s{sKVl}, {slot+8192}'); o.append('s_nop 0')
            for p_ in range(2): o.append(f'buffer_load_dwordx4 v{vKVd+p_}, {sr(sV,4)}, s{sVo} offen offset:{1024*p_}{nt} lds ;@{tag}')
        o.append(f's_mov_b32 s{sVo}, s{sKVo}')
        o.append(f's_add_u32 s{sKVo}, s{sKVo}, 8192')
        return o
    def k_reads(self, tile):
        slot = (tile % 4) * 16384
        return {(u, t): f'ds_read_b128 {ar(aK+(u*4+t)*4,4)}, v{vKr+t} offset:{slot+4096*u}' for u in range(2) for t in range(4)}
    def v_reads(self, tile):
        slot = ((tile+1) % 4) * 16384 + 8192
        return {(tau, jj): f'ds_read_b64_tr_b16 {ar(aV+tau*4+2*jj,2)}, v{vVr+tau} offset:{slot+4096*jj}' for tau in range(8) for jj in range(2)}

    def q_chunk(self, c, first=False, p1=None, p2=None, wait_tag=None, last=False):
        e = self.e
        e('s_waitcnt lgkmcnt(0)')
        g = {}
        for i, r in enumerate(self.q_reads(1, aXB, aWB)): g.setdefault(i + (1 if i > 0 else 0) * 0, []).append(r)
        if p1:
            nl = sum(1 for x in p1 if x.startswith('buffer_load'))
            if nl <= 6: self.spread(g, [x for x in p1 if x != 's_nop 0'], 19, 2, 31)
            else: self.spread(g, [x for x in p1 if x != 's_nop 0'], 1, len_step(p1, 30), 31)
        self.stream(self.q_mfmas(aXA, aWA, first=first), g)
        self.vmwait(wait_tag, ' lgkmcnt(0)')
        e('s_barrier')
        g = {}
        if not last:
            for x in [f's_mov_b32 s{sDelta}, 49152', f's_cmp_eq_u32 s{sBase}, {LDS_Q0+2*49152}', f's_cselect_b32 s{sDelta}, {(-98304) & 0xffffffff:#x}, s{sDelta}']: e(x)
            upd = [f'v_add_u32 v{r}, s{sDelta}, v{r}' for r in list(range(vXr, vXr+2)) + list(range(vWr, vWr+8))]
            for i, u in enumerate(upd): g.setdefault(i//2, []).append(u)
            for i, r in enumerate(self.q_reads(0, aXA, aWA)): g.setdefault(5 + i, []).append(r)
            g.setdefault(0, []).insert(0, f's_mov_b32 s{sPB}, s{sBase}')
            g.setdefault(0, []).insert(1, f's_add_u32 s{sBase}, s{sBase}, s{sDelta}')
        else:
            for i, r in enumerate(self.k_reads(0).values()): g.setdefault(2 + i, []).append(r)
        if p2: self.spread(g, [x for x in p2 if x != 's_nop 0'], 1, len_step(p2, 30), 31)
        self.stream(self.q_mfmas(aXB, aWB), g)

    def q_phase(self):
        e = self.e
        self.vmwait('q0')
        e(f'''s_cmp_lg_u32 s{sW}, 0
s_cbranch_scc1 L_nonce2
v_or_b32 v{vT}, v{vNON}, v{vNON+1}
v_cmp_eq_u32 vcc, 0, v{vT}
v_mov_b32 v{vT+1}, s{sPB}
v_mov_b32 v{vT+2}, s{sDelta}
v_cndmask_b32 v{vNON}, v{vNON}, v{vT+1}, vcc
v_cndmask_b32 v{vNON+1}, v{vNON+1}, v{vT+2}, vcc''')
        self.p.label('L_nonce2')
        e('s_barrier')
        self.stamp()
        e(f's_mov_b32 s{sBase}, {LDS_Q0}')
        for r in self.q_reads(0, aXA, aWA): e(r)
        e(f's_mov_b32 s{sPB}, {LDS_Q0+2*49152}')
        self.q_chunk(0, first=True, p1=self.qdma('qa', base=sPB) + self.advance_kch(), p2=self.qdma('qb', base=sPB, half=0), wait_tag='q1')
        e(f's_mov_b32 s{sCnt}, 5')
        e('.p2align 4')
        self.p.label('L_q')
        self.q_chunk(1, p1=self.qdma('qb', base=sPB, half=1) + self.advance_kch(), p2=self.qdma('qc', base=sPB, half=0), wait_tag='@Q')
        e(f's_sub_u32 s{sCnt}, s{sCnt}, 1\ns_cmp_lg_u32 s{sCnt}, 0\ns_cbranch_scc1 L_q')
        self.q_chunk(6, p1=self.qdma('q8', base=sPB, half=1), p2=self.kv_dma(0, doV=False) + self.kv_dma(1), wait_tag='@Q6')
        self.q_chunk(7, p1=self.kv_dma(2), p2=self.kv_dma(3), wait_tag='q8')
        self.q_chunk(8, wait_tag='st0', last=True, p2=self.wo_dma(0))
        self.stamp()
        e('s_nop 7')
        extra = [x for x in self.wo_dma(1) if x != 's_nop 0'] + [x for x in self.wo_warm() if x != 's_nop 0']
        slots = []
        cur = []
        for x in extra:
            cur.append(x)
            if x.startswith('buffer_load'): slots.append(cur); cur = []
        assert not cur
        it = iter(slots)
        for t in range(4):
            for qb in range(4):
                grp = next(it, [])
                for x in grp[:-1]: e(x)
                pend_load = grp[-1:]
                X = acc(qb, 2*t); Y = acc(qb, 2*t+1)
                for r in (X, X+2, Y, Y+2):
                    e(f'v_pk_mul_f32 {vr(r,2)}, {vr(r,2)}, {sr(sScale,2)}')
                for x in pend_load: e(x)
                T = vT + 4*(qb % 2)
                e(f'v_cvt_pk_bf16_f32 v{T}, v{X}, v{X+1}')
                e(f'v_cvt_pk_bf16_f32 v{T+1}, v{X+2}, v{X+3}')
                e(f'v_cvt_pk_bf16_f32 v{T+2}, v{Y}, v{Y+1}')
                e(f'v_cvt_pk_bf16_f32 v{T+3}, v{Y+2}, v{Y+3}')
                e('s_nop 0')
                e(f'v_permlane32_swap_b32 v{T}, v{T+2}')
                e(f'v_permlane32_swap_b32 v{T+1}, v{T+3}')
                e('s_nop 0')
                e(f'v_permlane16_swap_b32 v{T}, v{T+2}')
                e(f'v_permlane16_swap_b32 v{T+1}, v{T+3}')
                for i in range(4): e(f'v_accvgpr_write_b32 a{aQ+(qb*4+t)*4+i}, v{T+i}')
        for grp in it:
            for x in grp[:-1]: e(x)
            e('s_nop 0'); e(grp[-1])

    def wo_warm(self):
        e = []
        if self.c.mapping == 'A':
            e += [f's_add_u32 s{sT2}, s{sHH}, 4']
        else:
            e += [f's_and_b32 s{sT2}, s{sB_}, 3', f's_lshl_b32 s{sT2}, s{sT2}, 1', f's_add_u32 s{sT2}, s{sT2}, s{sMH}']
        e += [f's_and_b32 s{sT2}, s{sT2}, 7', f's_mul_i32 s{sT2}, s{sT2}, {128*1152}', f's_add_u32 s{sWOs}, s{sT2}, s{sWOo}', f's_mov_b32 s{sWOm}, {DUMMY_LDS}']
        for k in range(3):
            l = self.wo_loads3(k, 'warm')
            e += [l[0], 's_nop 0'] + l[1:]
        return e

    def qk_mfmas(self, qb, sbuf, cinit):
        m = []
        for u in range(2):
            d = vr(sbuf + 4*u, 4)
            for t in range(4):
                m.append(f'v_mfma_f32_16x16x32_bf16 {d}, {ar(aK+(u*4+t)*4,4)}, {ar(aQ+(qb*4+t)*4,4)}, {cinit if t == 0 else d}')
        return m
    def pv_mfmas(self, qb, pbuf, first):
        m = []
        for tau in range(8):
            d = vr(acc(qb, tau), 4)
            m.append(f'v_mfma_f32_16x16x32_bf16 {d}, {ar(aV+tau*4,4)}, {vr(pbuf,4)}, {"0" if first else d}')
        d = vr(LAC + 4*qb, 4)
        m.append(f'v_mfma_f32_16x16x32_bf16 {d}, {ar(aONE,4)}, {vr(pbuf,4)}, {"0" if first else d}')
        return m
    def wo_loads3(self, k, tag):
        o = [f's_add_u32 m0, s{sWOm}, {3072*k}']
        for i in range(3*k, 3*k+3):
            o.append(f'buffer_load_dwordx4 v{vWOd+i}, {sr(sWO,4)}, s{sWOs} offen offset:{1024*(i%3)} {self.c.wo_flags} lds ;@{tag}')
        return o
    def wo_setup(self, gam):
        return [f's_add_u32 s{sT2}, s{sHH}, {gam}', f's_and_b32 s{sT2}, s{sT2}, 7', f's_mul_i32 s{sT2}, s{sT2}, {128*1152}',
                f's_add_u32 s{sWOs}, s{sT2}, s{sWOo}', f's_mul_i32 s{sT3}, s{sW}, 9216', f's_add_u32 s{sWOm}, s{sT3}, {G_BASE[gam % 4]}']
    def wo_dma(self, gam):
        o = self.wo_setup(gam)
        for k in range(3):
            l = self.wo_loads3(k, f'wo{gam}')
            o += [l[0], 's_nop 0'] + l[1:]
        return o

    def unit(self, n, sm=True, pv=True, first_pv=False, skipv=False, wo3=None, pre=None, tail=False):
        e = self.e
        qb = n % 4; tile = n // 4
        if qb == 0:
            if tail and tile + 1 > 32: e('s_waitcnt lgkmcnt(0)')
            else: self.vmwait(f'st{(tile+1) % 4}', ' lgkmcnt(0)')
            e('s_barrier')
        mf = self.qk_mfmas(qb, SB + 8*(n % 2), vr(NM + 4*qb, 4)) if not (tail and n >= 128) else []
        if pv: mf += self.pv_mfmas((n-2) % 4, PB + 4*((n-2) % 2), first_pv)
        N = len(mf)
        g = {}
        def put(i, x): g.setdefault(min(i, N-1), []).append(x)
        if pre:
            for x in pre: put(0, x)
        if sm and not (tail and n - 1 > 127):
            s = SB + 8*((n-1) % 2); pb = PB + 4*((n-1) % 2)
            if N >= 17: eg = [0, 2, 4, 6, 8, 10, 12, 14]; cg = [3, 7, 11, 15]
            elif N == 9: eg = [0, 1, 2, 3, 4, 5, 6, 7]; cg = [2, 4, 6, 8]
            else: eg = [0, 1, 2, 3, 4, 5, 6, 6]; cg = [3, 5, 7, 7]
            for i in range(8): put(eg[i], f'v_exp_f32 v{s+i}, v{s+i}')
            for i in range(4): put(cg[i], f'v_cvt_pk_bf16_f32 v{pb+i}, v{s+2*i}, v{s+2*i+1}')
        if qb == 0 and not (tail and tile + 4 > 32):
            d = [x for x in self.kv_dma(tile + 4) if x != 's_nop 0']
            pos = [0, 1, 5, 8, 9, 13, N-1, N-1] if N >= 17 else [0, 1, 2, 3, 4, 5, N-1, N-1]
            for x, gi in zip(d, pos): put(gi, x)
        if qb == 3 and not (tail and tile + 1 > 31):
            kr = self.k_reads(tile + 1)
            for k, gi in {(0,0):1, (0,1):1, (0,2):3, (0,3):3, (1,0):5, (1,1):5, (1,2):7, (1,3):9}.items(): put(gi, kr[k])
        if qb in (1, 2) and pv and not skipv and not (tail and tile > 31):
            vrd = self.v_reads(tile)
            pl = {(0,0):9, (0,1):9, (1,0):11, (1,1):11, (2,0):13, (2,1):13, (3,0):15, (3,1):16, (4,0):16} if qb == 1 else \
                 {(4,1):1, (5,0):1, (5,1):3, (6,0):3, (6,1):5, (7,0):5, (7,1):7}
            for k, gi in pl.items(): put(gi, vrd[k])
        if wo3 is not None:
            assert qb == 2
            l = self.wo_loads3(wo3, 'wop')
            put(8, l[0]); put(9, l[1]); put(13, l[2]); put(16, l[3])
        if tail and n in (128, 129):
            lst = [x for x in self.wo_dma(2) if x != 's_nop 0']
            k = lst.index([x for x in lst if ' m0,' in x][2 if n == 128 else 0]) if False else None
            cut = [i for i, x in enumerate(lst) if ' m0,' in x][2]
            part = lst[:cut] if n == 128 else lst[cut:]
            self.spread(g, part, 0, 1, N-1)
        abl = self.c.abl
        if abl and n >= 6:
            for k in list(g):
                keep = []
                for x in g[k]:
                    if 'd' in abl and x.startswith('buffer_load'): continue
                    if 'l' in abl and x.startswith('ds_read'): continue
                    if 'e' in abl and x.startswith('v_exp'): continue
                    if 'c' in abl and x.startswith('v_cvt'): continue
                    keep.append(x)
                g[k] = keep
            if 'o' in abl and pv: mf = mf[:-1]; g = {k: v for k, v in g.items() if k < len(mf)} if False else g;
            if 'o' in abl and pv:
                last = g.pop(16, [])
                g.setdefault(15, []).extend(last)
        self.stream(mf, g)

    def attn_prologue(self):
        e = self.e
        e('s_waitcnt lgkmcnt(0)')
        for qb in range(4):
            d = vr(SB + 4*qb, 4)
            for t in range(4):
                e(f'v_mfma_f32_16x16x32_bf16 {d}, {ar(aK+t*4,4)}, {ar(aQ+(qb*4+t)*4,4)}, {"0" if t == 0 else d}')
        e('s_nop 7')
        for qb in range(4):
            s = SB + 4*qb; T = vT + 2*qb
            e(f'v_max3_f32 v{T}, v{s}, v{s+1}, v{s+2}')
            e(f'v_max_f32 v{T}, v{T}, v{s+3}')
            e(f'v_mov_b32 v{T+1}, v{T}')
        e('s_nop 0')
        for qb in range(4): e(f'v_permlane32_swap_b32 v{vT+2*qb}, v{vT+2*qb+1}')
        for qb in range(4): e(f'v_max_f32 v{vT+2*qb}, v{vT+2*qb}, v{vT+2*qb+1}')
        for qb in range(4): e(f'v_mov_b32 v{vT+2*qb+1}, v{vT+2*qb}')
        e('s_nop 0')
        for qb in range(4): e(f'v_permlane16_swap_b32 v{vT+2*qb}, v{vT+2*qb+1}')
        for qb in range(4): e(f'v_max_f32 v{vT+2*qb}, v{vT+2*qb}, v{vT+2*qb+1}')
        for qb in range(4):
            for i in range(4): e(f'v_sub_f32 v{NM+4*qb+i}, 0, v{vT+2*qb}')
        e('s_nop 1')

    def attention(self):
        e = self.e
        self.attn_prologue()
        self.stamp()
        self.unit(0, sm=False, pv=False)
        for r in self.v_reads(0).values(): e(r)
        self.unit(1, pv=False)
        e('s_waitcnt lgkmcnt(0)')
        self.unit(2, first_pv=True, skipv=True)
        self.unit(3, first_pv=True)
        self.unit(4, first_pv=True)
        self.unit(5, first_pv=True)
        e(f's_mov_b32 s{sCnt}, 7')
        e('.p2align 4')
        self.p.label('L_att')
        for n in range(6, 22):
            self.unit(n)
        e(f's_sub_u32 s{sCnt}, s{sCnt}, 1\ns_cmp_lg_u32 s{sCnt}, 0\ns_cbranch_scc1 L_att')
        for n in range(118, 130):
            self.unit(n, tail=True)
            if n == 128: e('s_nop 1')

    def flag_addr(self, base, idx_code):
        pass
    def poll(self, name, nl, vaddr):
        e = self.e
        e(f's_mov_b32 s{sT2}, 0')
        self.p.label(f'L_{name}_poll')
        e(f'''global_load_dwordx2 {vr(vT+10,2)}, v{vaddr}, s[18:19] sc1 ;@x
s_waitcnt vmcnt(0)
v_cmp_eq_u32 vcc, v{vT+10}, v{vNON}
v_cmp_eq_u32 s[{sT0}:{sT1}], v{vT+11}, v{vNON+1}
s_add_u32 s{sT2}, s{sT2}, 1
s_and_b64 vcc, vcc, s[{sT0}:{sT1}]
s_cmp_eq_u32 vcc_lo, {(1 << nl) - 1}
s_cbranch_scc1 L_{name}_ok
s_cmp_lt_u32 s{sT2}, 0x80000
s_cbranch_scc1 L_{name}_poll''')
        self.p.label(f'L_{name}_ok')

    def publish_o(self):
        e = self.e
        e('s_nop 7')
        e(f'''s_lshl_b32 s{sT0}, s{sH}, 16
s_lshl_b32 s{sT1}, s{sW}, 14
s_add_u32 s{sOo}, s{sT0}, s{sT1}''')
        for qb in range(4): e(f'v_rcp_f32 v{vT+qb}, v{LAC+4*qb}')
        for qb in range(4):
            R = vT + 4 + 2*(qb % 2)
            e(f'v_mov_b32 v{R}, v{vT+qb}\nv_mov_b32 v{R+1}, v{vT+qb}')
            for t in range(4):
                X = acc(qb, 2*t); Y = acc(qb, 2*t+1)
                for r in (X, X+2, Y, Y+2):
                    e(f'v_pk_mul_f32 {vr(r,2)}, {vr(r,2)}, {vr(R,2)}')
                T = SB + 4*t
                e(f'v_cvt_pk_bf16_f32 v{T}, v{X}, v{X+1}')
                e(f'v_cvt_pk_bf16_f32 v{T+1}, v{X+2}, v{X+3}')
                e(f'v_cvt_pk_bf16_f32 v{T+2}, v{Y}, v{Y+1}')
                e(f'v_cvt_pk_bf16_f32 v{T+3}, v{Y+2}, v{Y+3}')
                e(f's_add_u32 s{sT0}, s{sOo}, {(qb*4+t)*1024}')
                e(f'buffer_store_dwordx4 {vr(T,4)}, v{vL16}, {sr(sOW,4)}, s{sT0} offen {self.c.st_flags} ;@ost')
            e(f's_cmp_lg_u32 s{sMH}, {qb >> 1}\ns_cbranch_scc1 L_own_skip{qb}')
            for t in range(4):
                for i in range(4):
                    e(f'v_accvgpr_write_b32 a{aOB + (t*2 + (qb & 1))*4 + i}, v{SB+4*t+i}')
            self.p.label(f'L_own_skip{qb}')
        for x in self.wo_dma(3): e(x)
        e(f'''s_lshl_b32 s{sT0}, s{sB_}, 5
s_add_u32 s{sT1}, s{sT0}, s{sH}
s_lshl_b32 s{sT1}, s{sT1}, 7
s_add_u32 s{sT1}, s{sT1}, {FLG_O}
v_mov_b32 v{vT}, s{sT1}
s_lshl_b32 s{sT1}, s{sHG}, 3
s_add_u32 s{sT0}, s{sT0}, s{sT1}
s_lshl_b32 s{sT0}, s{sT0}, 7
s_add_u32 s{sT0}, s{sT0}, {FLG_O}
v_lshlrev_b32 v{vT+1}, 3, v{vL16}
v_add_u32 v{vT+1}, s{sT0}, v{vT+1}''')
        self.stamp()

    def o_sync(self):
        e = self.e
        self.vmwait('ost')
        e('s_barrier')
        self.stamp()
        e(f's_cmp_lg_u32 s{sW}, 0\ns_cbranch_scc1 L_o_join')
        e('s_mov_b64 exec, 1')
        e(f'global_store_dwordx2 v{vT}, {vr(vNON,2)}, s[18:19] sc1 ;@x')
        e('s_mov_b64 exec, 0xff')
        e(f'v_readfirstlane_b32 s{sT0}, v{vNON}\nv_readfirstlane_b32 s{sT1}, v{vNON+1}\ns_nop 1\nv_mov_b32 v{vNON}, s{sT0}\nv_mov_b32 v{vNON+1}, s{sT1}')
        self.poll('o', 8, vT+1)
        e('s_mov_b64 exec, -1')
        self.p.label('L_o_join')
        e('s_barrier')
        self.stamp()

    def ob_loads(self, gam):
        o = [f's_add_u32 s{sT2}, s{sHH}, {gam}', f's_and_b32 s{sT2}, s{sT2}, 7', f's_lshl_b32 s{sT3}, s{sHG}, 3',
             f's_add_u32 s{sT2}, s{sT2}, s{sT3}', f's_lshl_b32 s{sT2}, s{sT2}, 16', f's_add_u32 s{sT2}, s{sT2}, s{sOo}']
        for t in range(4):
            for qx in range(2):
                r = aOB + ((gam % 4)*8 + t*2 + qx)*4
                va = vL16 if qx == 0 else vT+2
                o.append(f'buffer_load_dwordx4 {ar(r,4)}, v{va}, {sr(sOW,4)}, s{sT2} offen offset:{t*1024} {self.c.ld_flags} ;@o{gam}')
        return o

    def o_phase(self):
        e = self.e
        e(f'''s_lshl_b32 s{sT0}, s{sW}, 14
s_lshl_b32 s{sT1}, s{sMH}, 13
s_add_u32 s{sOo}, s{sT0}, s{sT1}
v_add_u32 v{vT+2}, 4096, v{vL16}''')
        for k in range(4): e(f'v_add_u32 v{vT+4+k}, {G_BASE[k]}, v{vWOr}')
        def wreads(gam, t):
            a = vT + 4 + gam % 4
            return [[f'ds_read_b64_tr_b16 {ar(aWO+4*nu+2*jj,2)}, v{a} offset:{t*9216 + jj*4608 + nu*32}' for jj in range(2)] for nu in range(9)]
        for pr in wreads(0, 0):
            for x in pr: e(x)
        sched = {1: {0: ('o', 3), 1: ('w', 4), 2: ('o', 4)},
                 2: {1: ('w', 5), 2: ('o', 5)}, 3: {1: ('w', 6), 2: ('o', 6)}, 4: {1: ('w', 7), 2: ('o', 7)}}
        for gam in range(8):
            if gam == 1:
                self.o_sync()
                for x in self.ob_loads(1): e(x)
                for x in self.ob_loads(2): e(x)
            for t in range(4):
                if t == 0 and gam > 0: self.vmwait(f'o{gam}')
                if t == 3 and gam < 7:
                    if gam + 1 >= 2: self.vmwait(f'wo{gam+1}', ' lgkmcnt(0)')
                    else: e('s_waitcnt lgkmcnt(0)')
                    e('s_barrier')
                mf = []; g = {}
                nxt = (gam, t+1) if t < 3 else (gam+1, 0)
                wr = wreads(*nxt) if nxt[0] < 8 else None
                for nu in range(9):
                    for qx in range(2):
                        d = vr(OACC + (nu*2+qx)*4, 4)
                        first = (gam == 0 and t == 0)
                        b = aOB + ((gam % 4)*8 + t*2 + qx)*4
                        mf.append(f'v_mfma_f32_16x16x32_bf16 {d}, {ar(aWO+4*nu,4)}, {ar(b,4)}, {"0" if first else d}')
                    if wr:
                        gi = nu*2 + 1
                        g.setdefault(gi, []).append(wr[nu][0])
                        g.setdefault(min(gi+1, 17), []).append(wr[nu][1])
                it = sched.get(gam, {}).get(t)
                if it and ((it[0] == 'o' and 'O' in self.c.abl) or (it[0] == 'w' and 'W' in self.c.abl)):
                    e(f'; ablated ;@{"o" if it[0] == "o" else "wo"}{it[1]}')
                    self.fake_tags.append(('o' if it[0] == 'o' else 'wo') + str(it[1]))
                    it = None
                if it:
                    if it[0] == 'o': self.spread(g, self.ob_loads(it[1]), 0, 2, 17)
                    else: self.spread(g, [x for x in self.wo_dma(it[1]) if x != 's_nop 0'], 0, 1, 17)
                self.stream(mf, g)
        self.stamp()

    def final(self):
        e = self.e
        e('s_nop 7')
        e(f'''s_lshl_b32 s{sT0}, s{sHG}, 2
s_add_u32 s{sT0}, s{sT0}, s{sW}
s_mul_i32 s{sT0}, s{sT0}, 18432''')
        for own in range(4):
            qx = own & 1; nus = range(5, 9) if own >> 1 else range(5)
            e(f's_cmp_eq_u32 s{sHG}, {own}\ns_cbranch_scc1 L_skip_send{own}')
            for nu in nus:
                r = OACC + (nu*2+qx)*4
                e(f's_add_u32 s{sT1}, s{sT0}, {(qx*9 + nu)*1024}')
                e(f'buffer_store_dwordx4 {vr(r,4)}, v{vL16}, {sr(sPT,4)}, s{sT1} offen {self.c.st_flags}')
            self.p.label(f'L_skip_send{own}')
        e(f'''s_lshl_b32 s{sT0}, s{sB_}, 1
s_add_u32 s{sT0}, s{sT0}, s{sMH}
s_lshl_b32 s{sT0}, s{sT0}, 2
s_add_u32 s{sT0}, s{sT0}, s{sNQ}
s_lshl_b32 s{sT0}, s{sT0}, 9
s_add_u32 s{sT0}, s{sT0}, {FLG_P}
s_lshl_b32 s{sT1}, s{sHG}, 7
s_add_u32 s{sT1}, s{sT1}, s{sT0}
v_mov_b32 v{vT}, s{sT1}
v_lshlrev_b32 v{vT+1}, 3, v{vL16}
v_add_u32 v{vT+1}, s{sT0}, v{vT+1}''')
        T = vT + 8
        e(f'''v_bfe_u32 v{T}, v{vL16}, 4, 4
v_lshrrev_b32 v{T+1}, 8, v{vL16}
s_and_b32 s{sT0}, s{sHG}, 1
s_lshl_b32 s{sT3}, s{sW}, 6
s_lshl_b32 s{sCnt}, s{sMH}, 5
s_add_u32 s{sT3}, s{sT3}, s{sCnt}
s_lshl_b32 s{sCnt}, s{sT0}, 4
s_add_u32 s{sT3}, s{sT3}, s{sCnt}
v_add_u32 v{T}, s{sT3}, v{T}
v_mul_u32_u24 v{T}, 1152, v{T}
v_lshl_add_u32 v{T}, v{T+1}, 3, v{T}''')
        e('s_waitcnt vmcnt(0)')
        e('s_barrier')
        self.stamp()
        e(f's_cmp_lg_u32 s{sW}, 0\ns_cbranch_scc1 L_p_join')
        e('s_mov_b64 exec, 1')
        e(f'global_store_dwordx2 v{vT}, {vr(vNON,2)}, s[18:19] sc1')
        e('s_mov_b64 exec, 0xf')
        self.poll('p', 4, vT+1)
        e('s_mov_b64 exec, -1')
        self.p.label('L_p_join')
        e('s_barrier')
        self.stamp()
        e(f's_mul_i32 s{sOo}, s{sW}, 18432')
        e(f's_mul_i32 s{sWOs}, s{sNQ}, 288')
        for own in range(4):
            qx = own & 1; nus = list(range(5, 9) if own >> 1 else range(5))
            nxt = f'L_fin_v{own+1}' if own < 3 else None
            self.p.label(f'L_fin_v{own}')
            if nxt: e(f's_cmp_lg_u32 s{sHG}, {own}\ns_cbranch_scc1 {nxt}')
            srcs = [s for s in range(4) if s != own]
            for j, src in enumerate(srcs):
                for k, nu in enumerate(nus):
                    r = 80 + (j*5 + k)*4
                    e(f's_add_u32 s{sT3}, s{sOo}, {src*4*18432 + (qx*9+nu)*1024}')
                    e(f'buffer_load_dwordx4 {vr(r,4)}, v{vL16}, {sr(sPT,4)}, s{sT3} offen {self.c.ld_flags}')
            e('s_waitcnt vmcnt(0)')
            for k, nu in enumerate(nus):
                a = OACC + (nu*2+qx)*4
                for i in range(4):
                    e(f'v_add_f32 v{a+i}, v{a+i}, v{80+k*4+i}')
                    e(f'v_add_f32 v{100+k*4+i}, v{100+k*4+i}, v{120+k*4+i}')
                for i in range(4):
                    e(f'v_add_f32 v{a+i}, v{a+i}, v{100+k*4+i}')
                e(f'v_cvt_pk_bf16_f32 v{144+2*k}, v{a}, v{a+1}')
                e(f'v_cvt_pk_bf16_f32 v{144+2*k+1}, v{a+2}, v{a+3}')
                e(f'buffer_store_dwordx2 {vr(144+2*k,2)}, v{T}, {sr(sOUT,4)}, s{sWOs} offen offset:{32*nu} {self.c.out_flags}')
            if nxt: e('s_branch L_fin')

    def dump_q(self):
        e = self.e
        e(f's_lshl_b32 s{sT0}, s{sH}, 16\ns_lshl_b32 s{sT1}, s{sW}, 14\ns_add_u32 s{sT0}, s{sT0}, s{sT1}')
        for f in range(16):
            e(f's_add_u32 s{sT1}, s{sT0}, {f*1024}')
            e(f'buffer_store_dwordx4 {ar(aQ+4*f,4)}, v{vL16}, {sr(sOW,4)}, s{sT1} offen')
        e('s_waitcnt vmcnt(0)')

    def build(self):
        c = self.c
        self.setup()
        self.q_phase()
        if c.stop == 'q':
            self.e('s_nop 4'); self.dump_q()
        else:
            self.attention()
            self.stamp()
            self.publish_o()
            if c.stop != 'attn':
                self.o_phase()
                self.final()
        self.p.label('L_fin')
        if c.stamps:
            self.stamp()
            e = self.e; n = self.nstamp
            e('s_waitcnt lgkmcnt(0) vmcnt(0)')
            e(f's_mul_i32 s{sT0}, s2, {8*16}\ns_add_u32 s{sT0}, s{sT0}, 0x0F000000\nv_mov_b32 v{vT}, s{sT0}')
            e(f's_cmp_lg_u32 s{sW}, 0\ns_cbranch_scc1 L_end\ns_mov_b64 exec, 1')
            for i in range(n):
                e(f'v_mov_b32 v{vT+2}, s{sStamp+2*i}\nv_mov_b32 v{vT+3}, s{sStamp+2*i+1}\nglobal_store_dwordx2 v{vT}, {vr(vT+2,2)}, s[18:19] offset:{8*i}\ns_nop 1')
        self.p.label('L_end')
        self.e('s_endpgm')
        lines = resolve_waits(self.p.lines)
        return lines

def len_step(lst, span):
    n = sum(1 for x in lst if x.startswith('buffer_load'))
    m = sum(1 for x in lst if ' m0,' in x)
    return max(1, (span - m) // max(1, n))

LOOPS = ('L_q', 'L_att')
def make_trace(lines, reps=3):
    labels = {l[:-1]: i for i, l in enumerate(lines) if l.endswith(':')}
    loopd = {}
    for i, l in enumerate(lines):
        t = l.strip().split()
        if t and (t[0].startswith('s_cbranch') or t[0] == 's_branch') and len(t) > 1 and t[1] in LOOPS and labels[t[1]] < i:
            loopd[labels[t[1]]] = i
    trace = []; i = 0
    while i < len(lines):
        if i in loopd:
            b = loopd[i]
            trace += list(range(i, b+1)) * reps
            i = b + 1
        else:
            trace.append(i); i += 1
    return trace

VMOPS = ('buffer_load', 'buffer_store', 'global_load', 'global_store', 'global_atomic', 'buffer_atomic')
def resolve_waits(lines):
    trace = make_trace(lines)
    vneed = {}
    hist = []
    SKIP = {'L_o_w0'}
    skipping = None
    for li in trace:
        l = lines[li]; t = l.strip()
        if t.startswith(VMOPS):
            m = re.search(r';@(\w+)', t)
            tag = m.group(1) if m else ''
            if tag == 'x': continue
            hist.append(tag)
        m = re.search(r'vmcnt\(@(@?\w+)@\)', t)
        if m:
            tag = m.group(1)
            if tag == '@Q':
                n = 12
            elif tag == '@Q6':
                n = 12
            else:
                idx = [i for i, x in enumerate(hist) if x == tag]
                n = len(hist) - 1 - idx[-1] if idx else 63
            n = min(n, 63)
            vneed[li] = min(vneed.get(li, 99), n)
    out = []
    for i, l in enumerate(lines):
        if i in vneed: l = re.sub(r'vmcnt\(@@?\w+@\)', f'vmcnt({vneed[i]})', l)
        out.append(l)
    lines = out
    need = {}; q = []
    for li in trace:
        I = parse(lines[li])
        if I is None: continue
        if I.op == 's_waitcnt':
            for tok in I.ops:
                if tok.startswith('lgkmcnt'):
                    n = int(tok[8:-1]); q = q[len(q)-n:] if 0 < n < len(q) else ([] if n == 0 else q)
            continue
        touched = set(I.r + I.srcC + (I.w if I.cls != 'dsr' else []))
        k = None
        for idx, regs in enumerate(q):
            if regs & touched or (I.cls == 'dsr' and regs & set(I.w)): k = idx
        if k is not None:
            n = min(len(q) - 1 - k, 15)
            need[li] = min(need.get(li, 99), n)
            q = q[len(q)-n:] if n > 0 else []
        if I.cls == 'dsr': q.append(set(I.w))
        elif I.cls == 'dsw': q.append(set())
    out = []
    for i, l in enumerate(lines):
        if i in need: out.append(f'  s_waitcnt lgkmcnt({need[i]})')
        out.append(l)
    return out

HDR = f'''; fused q-proj + attention + o-proj, one workgroup per (batch, head); written with my own generator
; @launch grid=(256,1,1) block=(256,1,1) lds=163840
.amdgcn_target "amdgcn-amd-amdhsa--gfx950"
.text
.globl {KN}
.p2align 8
.type {KN},@function
{KN}:
'''
FTR = f'''
.section .rodata,"a"
.p2align 6
.amdhsa_kernel {KN}
  .amdhsa_next_free_vgpr 512
  .amdhsa_next_free_sgpr 102
  .amdhsa_accum_offset 256
  .amdhsa_group_segment_fixed_size 0
  .amdhsa_kernarg_size 64
  .amdhsa_user_sgpr_count 2
  .amdhsa_user_sgpr_kernarg_segment_ptr 1
  .amdhsa_system_sgpr_workgroup_id_x 1
.end_amdhsa_kernel
'''

def assemble_size(body):
    import subprocess, tempfile, os
    with tempfile.TemporaryDirectory() as d:
        s = os.path.join(d, 'k.s'); o = os.path.join(d, 'k.o')
        open(s, 'w').write(HDR + body + FTR)
        r = subprocess.run(['clang', '-x', 'assembler', '-target', 'amdgcn-amd-amdhsa', '-mcpu=gfx950', '-c', s, '-o', o], capture_output=True, text=True)
        if r.returncode: print(r.stderr[:3000]); sys.exit(1)
        r = subprocess.run(['llvm-readelf', '-S', o], capture_output=True, text=True)
        for ln in r.stdout.split('\n'):
            if ' .text ' in ln:
                f = ln.split(); k = f.index('PROGBITS'); return int(f[k+3], 16)
    return 0

def main():
    import argparse
    ap = argparse.ArgumentParser()
    ap.add_argument('-o', default='standalone__mha_block_cached__near_ridge.s')
    for n in ('stamps', 'cyc', 'norot', 'nopf', 'xstamps', 'nont', 'nowarm', 'fakeq'): ap.add_argument('--' + n, action='store_true')
    ap.add_argument('--abl', default=''); ap.add_argument('--outf', default=''); ap.add_argument('--mapping', default='m48'); ap.add_argument('--stop', default=None)
    ap.add_argument('--qflags', default=''); ap.add_argument('--stf', default='sc1'); ap.add_argument('--ldf', default='sc1'); ap.add_argument('--wof', default='')
    a = ap.parse_args()
    c = Cfg(); c.mapping = a.mapping; c.stamps = a.stamps; c.cyc = a.cyc; c.stop = a.stop; c.rot = not a.norot
    c.prefetch_code = not a.nopf; c.xstamps = a.xstamps; c.qflags = a.qflags; c.st_flags = a.stf; c.ld_flags = a.ldf; c.wo_flags = a.wof; c.nt = not a.nont; c.warm_wo = not a.nowarm; c.fakeq = a.fakeq; c.abl = a.abl; c.out_flags = a.outf
    g = Gen(c)
    lines = g.build()
    body = '\n'.join(lines)
    if c.prefetch_code:
        est = assemble_size(body.replace('; PFCODE', ''))
        n = max(1, (est - 64) // 4096)
        magic = (65536 + n - 1) // n
        assert all(((v*magic) >> 16) == v//n for v in range(33))
        pf = [f'  s_mul_i32 s{sT3}, s{sT2}, {magic}', f'  s_lshr_b32 s{sT3}, s{sT3}, 16', f'  s_mul_i32 s{sT3}, s{sT3}, {n}',
              f'  s_sub_u32 s{sT2}, s{sT2}, s{sT3}', f'  s_lshl_b32 s{sT2}, s{sT2}, 12', f'  v_add_u32 v{vT}, s{sT2}, v{vT}',
              f'  global_load_dwordx4 {vr(vT+18,4)}, v{vT}, s[100:101]']
        body = body.replace('; PFCODE', '\n'.join(pf))
    body = re.sub(r' *;@\w+', '', body)
    open(a.o, 'w').write(HDR + body + '\n' + FTR)
    ls = body.split('\n')
    check_trace([ls[i] for i in make_trace(ls, reps=2)], 'kernel')
    print('wrote', a.o, 'code bytes ~', assemble_size(body), 'stamps', g.nstamp)

main()
```

```python
import sys, math, struct, re
sys.path.insert(0, 'gen')
from asmlib import *

KN = 'standalone__mha_block_cached__near_ridge_kernel'

class Cfg:
    mapping = 'm48'; stamps = False; cyc = False; stop = None; rot = False; nt = True; prefetch_code = True
    qflags = ''; st_flags = 'sc1'; ld_flags = 'sc1'; wo_flags = ''; xstamps = False; warm_wo = True; fakeq = False; ra = 1; rb = 2; rs = 0; stampset = ''; abl = ''; out_flags = 'sc1'; kvspread = 0; woloop = 0; tailwo = 1

ACC = 0; LAC = 128; SB = 144; PB = 160; NM = 168
vKr = 184; vVr = 188; vKVd = 196; vWOd = 198; vWOr = 207; vL16 = 208
vXd = 209; vWd = 217; vXr = 221; vWr = 223
vNON = 232
vT = 234
aQ = 0; aK = 64; aV = 96; aONE = 228
aXA, aWA = 132, 148
aXB, aWB = 180, 196
aOB = 128; aWO = 0
OACC = 0
sX, sWQ, sK, sV, sWO, sOW, sPT, sOUT = 20, 24, 28, 32, 36, 40, 44, 48
sB_, sH, sW, sHG, sHH, sMH, sNQ = 52, 53, 54, 55, 56, 57, 58
sXoff, sWoff, sBase, sDelta, sKch, sCnt = 59, 60, 61, 62, 63, 64
sXL, sWL = 65, 66
sKVo, sKVl, sVo = 67, 68, 69
sT0, sT1, sT2, sT3 = 70, 71, 72, 73
sScale = 74
sWOo, sOo = 76, 77
sStamp = 78
sWOs, sWOm = 4, 5
sPrevB = 62
sPB = 3
sOS = 20
sWS = 28
sRot = 6

OFF_P = 0x1100000
PGRP = 4*4*18*1024
FLG_O = 0x2800000
FLG_P = 0x2820000
DUMMY_LDS = 73728
LDS_FLAG = 81920
vPK = 212
sRedo = 7
sSend = 32
LIMIT = 0x4e800000
LDS_Q0 = 16384
G_BASE = [90112, 126976, 36864, 0]
SCALE = math.log2(math.e) / math.sqrt(128.0)
def f32bits(x): return struct.unpack('<I', struct.pack('<f', x))[0]
def acc(qb, tau): return ACC + (qb*8 + tau)*4

class Gen:
    def __init__(self, cfg):
        self.c = cfg; self.p = Prog(); self.nstamp = 0; self.fake_tags = []
    def e(self, s): self.p.e(s)
    def stamp(self, kind='main'):
        if not self.c.stamps: return
        if self.c.stampset == 'O' and kind == 'main' and self.nstamp > 0: return
        if self.c.stampset != 'O' and kind == 'O': return
        i = self.nstamp; self.nstamp += 1
        assert sStamp + 2*i + 1 < 102
        self.e(f'{"s_memtime" if self.c.cyc else "s_memrealtime"} {sr(sStamp+2*i,2)}')
    def stream(self, mfmas, gaps):
        for i, m in enumerate(mfmas):
            self.e(m)
            fl = gaps.get(i, [])
            nonv = [x for x in fl if not x.lstrip().startswith('v_')]
            val = [x for x in fl if x.lstrip().startswith('v_')]
            for x in nonv + val: self.e(x)
        extra = [k for k in gaps if k >= len(mfmas) or k < 0]
        assert not extra, extra
    def spread(self, g, lst, lo, step, last):
        gi = lo; prev_m0 = False
        for x in lst:
            if x.startswith('buffer_load'):
                if prev_m0: gi += 1
                assert gi <= last, (gi, last, x)
                g.setdefault(gi, []).append(x)
                gi += step; prev_m0 = False
            else:
                g.setdefault(min(gi, last), []).append(x)
                if ' m0,' in x: prev_m0 = True
    def vmwait(self, tag, extra=''):
        self.e(f's_waitcnt vmcnt(@{tag}@){extra}')

    def setup(self):
        c = self.c; e = self.e
        e('s_cmp_ge_u32 s2, 256\ns_cbranch_scc1 L_end\ns_load_dwordx16 s[4:19], s[0:1], 0')
        self.stamp()
        if c.prefetch_code:
            e('s_getpc_b64 s[100:101]')
            e(f'v_lshlrev_b32 v{vT}, 4, v0')
            e(f's_lshr_b32 s{sT2}, s2, 3')
            e('; PFCODE')
        if c.mapping == 'A':
            e(f's_and_b32 s{sB_}, s2, 7\ns_lshr_b32 s{sH}, s2, 3')
        else:
            e(f'''s_and_b32 s{sT0}, s2, 7
s_lshr_b32 s{sT1}, s2, 3
s_and_b32 s{sB_}, s{sT1}, 3
s_and_b32 s{sT2}, s{sT0}, 1
s_lshl_b32 s{sT2}, s{sT2}, 2
s_add_u32 s{sB_}, s{sB_}, s{sT2}
s_lshr_b32 s{sT1}, s{sT1}, 2
s_lshr_b32 s{sT0}, s{sT0}, 1
s_lshl_b32 s{sH}, s{sT0}, 3
s_add_u32 s{sH}, s{sH}, s{sT1}''')
        e(f'''s_lshr_b32 s{sHG}, s{sH}, 3
s_and_b32 s{sHH}, s{sH}, 7
s_and_b32 s{sMH}, s{sHH}, 1
s_lshr_b32 s{sNQ}, s{sHH}, 1''')
        if c.rot:
            if c.mapping == 'A':
                e(f's_mov_b32 s{sT0}, s{sH}')
            else:
                e(f's_and_b32 s{sT0}, s{sB_}, 3\ns_mul_i32 s{sT0}, s{sT0}, {c.rb}\ns_lshr_b32 s{sT1}, s{sHH}, {c.rs}\ns_mul_i32 s{sT1}, s{sT1}, {c.ra}\ns_add_u32 s{sT0}, s{sT0}, s{sT1}')
            e(f'''s_mul_i32 s{sT1}, s{sT0}, 57
s_lshr_b32 s{sT1}, s{sT1}, 9
s_mul_i32 s{sT1}, s{sT1}, 9
s_sub_u32 s{sKch}, s{sT0}, s{sT1}''')
        else:
            e(f's_mov_b32 s{sKch}, 0')
        L, Q, G, C_, R, T0, T1, T2 = vT+2, vT+3, vT+4, vT+5, vT+6, vT+7, vT+8, vT+9
        self.lanevars = (L, Q, G, C_, R, T0, T1, T2)
        e(f'''v_lshrrev_b32 v{T0}, 6, v0
v_and_b32 v{L}, 63, v0
v_readfirstlane_b32 s{sW}, v{T0}
v_and_b32 v{Q}, 15, v{L}
v_lshrrev_b32 v{G}, 4, v{L}
v_and_b32 v{C_}, 3, v{L}
v_bfe_u32 v{R}, v{L}, 2, 2
v_lshlrev_b32 v{vL16}, 4, v{L}''')
        e(f'v_lshrrev_b32 v{T0}, 3, v{L}')
        e(f's_lshl_b32 s{sT0}, s{sW}, 6')
        e(f'v_add_u32 v{T0}, s{sT0}, v{T0}')
        e(f'v_mul_u32_u24 v{T0}, 1152, v{T0}')
        e(f'v_and_b32 v{T1}, 7, v{L}')
        for par in range(2):
            e(f'v_add_u32 v{T2}, {4*par}, v{G}')
            e(f'v_xor_b32 v{T2}, v{T2}, v{T1}')
            e(f'v_lshl_add_u32 v{T2}, v{T2}, 4, v{T0}')
            for i in range(par, 8, 2):
                e(f'v_add_u32 v{vXd+i}, {8*i*1152 - 1024*(i&3)}, v{T2}')
        e(f's_lshl_b32 s{sT0}, s{sW}, 4')
        e(f'v_add_u32 v{T0}, s{sT0}, v{G}')
        e(f'v_lshlrev_b32 v{T0}, 13, v{T0}')
        for hi in range(2):
            e(f'v_lshlrev_b32 v{T2}, 1, v{G}')
            if hi: e(f'v_or_b32 v{T2}, 8, v{T2}')
            e(f'v_xor_b32 v{T2}, v{T2}, v{Q}')
            e(f'v_lshl_add_u32 v{T2}, v{T2}, 4, v{T0}')
            for i in (2*hi, 2*hi+1):
                e(f'v_add_u32 v{vWd+i}, {4*i*8192 - 1024*i}, v{T2}')
        e('s_waitcnt lgkmcnt(0)')
        if c.xstamps: self.stamp()
        e(f'''s_mul_i32 s{sT0}, s{sB_}, 294912
s_add_u32 s{sX}, s4, s{sT0}
s_addc_u32 s{sX+1}, s5, 0
s_mov_b32 s{sX+2}, 294912
s_mov_b32 s{sX+3}, 0x20000
s_lshl_b32 s{sT0}, s{sH}, 8
s_add_u32 s{sWQ}, s10, s{sT0}
s_addc_u32 s{sWQ+1}, s11, 0
s_sub_u32 s{sWQ+2}, 4718592, s{sT0}
s_mov_b32 s{sWQ+3}, 0x20000
s_lshl_b32 s{sXL}, s{sW}, 13
s_lshl_b32 s{sWL}, s{sW}, 12
s_add_u32 s{sWL}, s{sWL}, 32768
s_lshl_b32 s{sXoff}, s{sKch}, 7
s_lshl_b32 s{sWoff}, s{sKch}, 19''')
        if c.fakeq:
            e(f's_mov_b32 s{sX}, s4\ns_mov_b32 s{sX+1}, s5\ns_mov_b32 s{sWQ}, s10\ns_mov_b32 s{sWQ+1}, s11\ns_mov_b32 s{sXoff}, 0\ns_mov_b32 s{sWoff}, 0')
        e(f's_mov_b32 s{sBase}, {LDS_Q0}')
        for x in self.qdma('q0'): e(x)
        for x in self.advance_kch(): e(x)
        if c.xstamps: self.stamp()
        e(f'''s_cmp_lg_u32 s{sW}, 0
s_cbranch_scc1 L_nonce_done
s_memrealtime s[{sT0}:{sT1}]
v_mov_b32 v{vT+12}, 0
v_mov_b32 v{vT+16}, 0
v_mov_b32 v{vT+17}, 0
s_waitcnt lgkmcnt(0)
s_or_b32 s{sT0}, s{sT0}, 1
v_mov_b32 v{vT+14}, s{sT0}
v_mov_b32 v{vT+15}, s{sT1}
s_mov_b64 exec, 1
global_atomic_cmpswap_x2 {vr(vNON,2)}, v{vT+12}, {vr(vT+14,4)}, s[16:17] sc0 sc1 ;@x
s_mov_b64 exec, -1
s_mov_b32 s{sPB}, s{sT0}
s_mov_b32 s{sDelta}, s{sT1}''')
        self.p.label('L_nonce_done')
        self.setup_early()
        if c.xstamps: self.stamp()
        e(f's_mov_b32 s{sBase}, {LDS_Q0+49152}')
        for x in self.qdma('q1'): e(x)
        for x in self.advance_kch(): e(x)

    def advance_kch(self):
        if self.c.fakeq: return ['s_nop 0']
        return [f's_add_u32 s{sKch}, s{sKch}, 1', f's_cmp_eq_u32 s{sKch}, 9', f's_cselect_b32 s{sKch}, 0, s{sKch}',
                f's_lshl_b32 s{sXoff}, s{sKch}, 7', f's_lshl_b32 s{sWoff}, s{sKch}, 19']

    def qdma(self, tag, base=None, half=None):
        b = sBase if base is None else base
        fl = self.c.qflags
        o = []
        xs = range(8) if half is None else (range(6) if half == 0 else range(6, 8))
        cur = None
        for i in xs:
            if cur != i >> 2:
                cur = i >> 2
                if cur == 0: o.append(f's_add_u32 m0, s{b}, s{sXL}')
                elif i == 4: o.append('s_add_u32 m0, m0, 4096')
                else:
                    o.append(f's_add_u32 s{sT0}, s{b}, s{sXL}'); o.append(f's_add_u32 m0, s{sT0}, 4096')
                o.append('s_nop 0')
            o.append(f'buffer_load_dwordx4 v{vXd+i}, {sr(sX,4)}, s{sXoff} offen offset:{1024*(i&3)} {fl} lds ;@{tag}')
        if half != 0:
            o.append(f's_add_u32 m0, s{b}, s{sWL}')
            o.append('s_nop 0')
            for i in range(4): o.append(f'buffer_load_dwordx4 v{vWd+i}, {sr(sWQ,4)}, s{sWoff} offen offset:{1024*i} {fl} lds ;@{tag}')
        return o

    def setup_early(self):
        e = self.e
        L, Q, G, C_, R, T0, T1, T2 = self.lanevars
        e(f'''v_lshrrev_b32 v{T0}, 1, v{Q}
v_lshlrev_b32 v{T1}, 7, v{Q}
s_add_u32 s{sT0}, s{sXL}, {LDS_Q0}
v_add_u32 v{T1}, s{sT0}, v{T1}''')
        for ks in range(2):
            e(f'v_add_u32 v{T2}, {4*ks}, v{G}\nv_xor_b32 v{T2}, v{T2}, v{T0}\nv_lshl_add_u32 v{vXr+ks}, v{T2}, 4, v{T1}')
        e(f'''v_lshl_add_u32 v{T0}, v{G}, 3, v{R}
v_lshlrev_b32 v{T1}, 8, v{T0}
v_and_b32 v{T2}, 1, v{C_}
v_lshl_add_u32 v{T1}, v{T2}, 3, v{T1}
v_add_u32 v{T1}, {LDS_Q0+32768}, v{T1}
v_and_b32 v{T0}, 1, v{G}
v_lshl_add_u32 v{T0}, v{T0}, 2, v{R}
v_lshlrev_b32 v{T0}, 1, v{T0}
v_lshrrev_b32 v{T2}, 1, v{C_}
v_xor_b32 v{T0}, v{T0}, v{T2}''')
        for tau in range(8):
            e(f'v_xor_b32 v{T2}, {2*tau}, v{T0}\nv_lshl_add_u32 v{vWr+tau}, v{T2}, 4, v{T1}')

    def deferred_kv(self):
        L, Q, G, C_, R, T0, T1, T2 = self.lanevars
        o = []
        def e(t): o.extend(x for x in t.split('\n') if x.strip())
        e(f'v_and_b32 v{T0}, 7, v{Q}\nv_lshlrev_b32 v{T0}, 1, v{T0}\nv_lshlrev_b32 v{T1}, 8, v{Q}')
        for t in range(4):
            e(f'v_add_u32 v{T2}, {4*t}, v{G}\nv_xor_b32 v{T2}, v{T2}, v{T0}\nv_lshl_add_u32 v{vKr+t}, v{T2}, 4, v{T1}')
        e(f'''v_lshl_add_u32 v{T0}, v{G}, 2, v{R}
v_lshlrev_b32 v{T1}, 8, v{T0}
v_and_b32 v{T0}, 7, v{T0}
v_lshlrev_b32 v{T0}, 1, v{T0}
v_and_b32 v{T2}, 1, v{C_}
v_lshl_add_u32 v{T1}, v{T2}, 3, v{T1}
v_lshrrev_b32 v{T2}, 1, v{C_}
v_xor_b32 v{T0}, v{T0}, v{T2}''')
        for tau in range(8):
            e(f'v_xor_b32 v{T2}, {2*tau}, v{T0}\nv_lshl_add_u32 v{vVr+tau}, v{T2}, 4, v{T1}')
        e(f'v_lshlrev_b32 v{T1}, 8, v{G}')
        for p_ in range(2):
            e(f'v_add_u32 v{T2}, {4*p_}, v{G}\nv_lshlrev_b32 v{T2}, 1, v{T2}\nv_xor_b32 v{T2}, v{T2}, v{Q}\nv_lshl_add_u32 v{vKVd+p_}, v{T2}, 4, v{T1}')
        e(f'v_mov_b32 v{T0}, 0x3f803f80')
        for i in range(4): e(f'v_accvgpr_write_b32 a{aONE+i}, v{T0}')
        e(f'''s_lshl_b32 s0, s{sB_}, 5
s_add_u32 s0, s0, s{sH}
s_lshl_b32 s0, s0, 18
s_add_u32 s{sK}, s6, s0
s_addc_u32 s{sK+1}, s7, 0
s_mov_b32 s{sK+2}, 262144
s_mov_b32 s{sK+3}, 0x20000
s_add_u32 s{sV}, s8, s0
s_addc_u32 s{sV+1}, s9, 0
s_mov_b32 s{sV+2}, 262144
s_mov_b32 s{sV+3}, 0x20000
s_lshl_b32 s{sKVl}, s{sW}, 11
s_mov_b32 s{sKVo}, s{sKVl}
s_mov_b32 s{sScale}, {f32bits(SCALE):#x}
s_mov_b32 s{sScale+1}, {f32bits(SCALE):#x}''')
        return o

    def deferred_wo(self):
        L, Q, G, C_, R, T0, T1, T2 = self.lanevars
        o = []
        def e(t): o.extend(x for x in t.split('\n') if x.strip())
        for i in range(9):
            e(f'''v_add_u32 v{T0}, {64*i}, v{L}
v_mul_u32_u24 v{T1}, 3641, v{T0}
v_lshrrev_b32 v{T1}, 16, v{T1}
v_mul_u32_u24 v{T2}, 18, v{T1}
v_sub_u32 v{T2}, v{T0}, v{T2}
v_mul_u32_u24 v{T1}, 1152, v{T1}
v_lshl_add_u32 v{T1}, v{T2}, 4, v{T1}
v_subrev_u32 v{vWOd+i}, {1024*(i%3)}, v{T1}''')
        e(f'v_lshl_add_u32 v{T0}, v{G}, 2, v{R}\nv_mul_u32_u24 v{T0}, 288, v{T0}\nv_lshl_add_u32 v{vWOr}, v{C_}, 3, v{T0}')
        e(f'''s_mov_b32 s{sWO}, s12
s_mov_b32 s{sWO+1}, s13
s_mov_b32 s{sWO+2}, 4718592
s_mov_b32 s{sWO+3}, 0x20000
s_lshl_b32 s0, s{sB_}, 21
s_add_u32 s{sOW}, s18, s0
s_addc_u32 s{sOW+1}, s19, 0
s_mov_b32 s{sOW+2}, 0x200000
s_mov_b32 s{sOW+3}, 0x20000
s_lshl_b32 s0, s{sB_}, 3
s_lshl_b32 s1, s{sMH}, 2
s_add_u32 s0, s0, s1
s_add_u32 s0, s0, s{sNQ}
s_mul_i32 s0, s0, {PGRP}
s_add_u32 s0, s0, {OFF_P}
s_add_u32 s{sPT}, s18, s0
s_addc_u32 s{sPT+1}, s19, 0
s_mov_b32 s{sPT+2}, {PGRP}
s_mov_b32 s{sPT+3}, 0x20000
s_mul_i32 s0, s{sB_}, 294912
s_add_u32 s{sOUT}, s14, s0
s_addc_u32 s{sOUT+1}, s15, 0
s_mov_b32 s{sOUT+2}, 294912
s_mov_b32 s{sOUT+3}, 0x20000
s_lshl_b32 s0, s{sW}, 5
s_lshl_b32 s1, s{sHG}, 10
s_add_u32 s0, s0, s1
s_mul_i32 s0, s0, 1152
s_mul_i32 s1, s{sNQ}, 288
s_add_u32 s{sWOo}, s0, s1''')
        if self.c.mapping == 'A': e(f's_mov_b32 s{sRot}, 0')
        else: e(f's_and_b32 s{sRot}, s{sB_}, 3\ns_lshl_b32 s{sRot}, s{sRot}, 1')
        e(f's_mov_b32 s{sRedo}, 0')
        return o

    def defer(self, g, lst, lo, hi):
        gi = lo; cnt = 0; lastv = False
        i = 0
        while i < len(lst):
            x = lst[i]; isv = x.startswith('v_')
            grp = [x]
            if x.startswith('s_add_u32') and i + 1 < len(lst) and lst[i+1].startswith('s_addc'): grp.append(lst[i+1])
            if cnt >= 2 or (not isv and lastv): gi += 1; cnt = 0; lastv = False
            assert gi <= hi, (gi, hi, len(lst) - i)
            g.setdefault(gi, []).extend(grp)
            cnt += len(grp); lastv = lastv or isv
            i += len(grp)
        return gi

    def q_reads(self, ks, aX, aW):
        xs = [f'ds_read_b128 {ar(aX+4*qb,4)}, v{vXr+ks} offset:{qb*2048}' for qb in range(4)]
        ws_ = [f'ds_read_b64_tr_b16 {ar(aW+4*tau+2*jj,2)}, v{vWr+tau} offset:{ks*8192+jj*1024}' for tau in range(8) for jj in range(2)]
        return [xs[0], ws_[0], ws_[1]] + xs[1:] + ws_[2:]
    def q_mfmas(self, aX, aW, first=False):
        m = []
        for tau in range(8):
            for qb in range(4):
                d = vr(acc(qb, tau), 4)
                m.append(f'v_mfma_f32_16x16x32_bf16 {d}, {ar(aW+4*tau,4)}, {ar(aX+4*qb,4)}, {"0" if first else d}')
        return m
    def kv_dma(self, stage, doK=True, doV=True):
        slot = (stage % 4) * 16384
        nt = ' nt' if self.c.nt else ''
        tag = f'st{stage % 4}'
        o = []
        if doK:
            o.append(f's_add_u32 m0, s{sKVl}, {slot}'); o.append('s_nop 0')
            for p_ in range(2): o.append(f'buffer_load_dwordx4 v{vKVd+p_}, {sr(sK,4)}, s{sKVo} offen offset:{1024*p_}{nt} lds ;@{tag}')
        if doV:
            o.append(f's_add_u32 m0, s{sKVl}, {slot+8192}'); o.append('s_nop 0')
            for p_ in range(2): o.append(f'buffer_load_dwordx4 v{vKVd+p_}, {sr(sV,4)}, s{sVo} offen offset:{1024*p_}{nt} lds ;@{tag}')
        o.append(f's_mov_b32 s{sVo}, s{sKVo}')
        o.append(f's_add_u32 s{sKVo}, s{sKVo}, 8192')
        return o
    def kv_one(self, stage, which):
        slot = (stage % 4) * 16384
        nt = ' nt' if self.c.nt else ''
        isV = which >= 2; p_ = which & 1
        srd = sV if isV else sK; so = sVo if isV else sKVo
        return [f's_add_u32 m0, s{sKVl}, {slot + (8192 if isV else 0)}',
                f'buffer_load_dwordx4 v{vKVd+p_}, {sr(srd,4)}, s{so} offen offset:{1024*p_}{nt} lds ;@st{stage % 4}']
    def wo_one(self, i, tag):
        return [f's_add_u32 m0, s{sWOm}, {3072*(i//3)}',
                f'buffer_load_dwordx4 v{vWOd+i}, {sr(sWO,4)}, s{sWOs} offen offset:{1024*(i%3)} {self.c.wo_flags} lds ;@{tag}']
    def k_reads(self, tile):
        slot = (tile % 4) * 16384
        return {(u, t): f'ds_read_b128 {ar(aK+(u*4+t)*4,4)}, v{vKr+t} offset:{slot+4096*u}' for u in range(2) for t in range(4)}
    def v_reads(self, tile):
        slot = ((tile+1) % 4) * 16384 + 8192
        return {(tau, jj): f'ds_read_b64_tr_b16 {ar(aV+tau*4+2*jj,2)}, v{vVr+tau} offset:{slot+4096*jj}' for tau in range(8) for jj in range(2)}

    def q_chunk(self, c, first=False, p1=None, p2=None, wait_tag=None, last=False, d1=None, d2=None):
        e = self.e
        e('s_waitcnt lgkmcnt(0)')
        g = {}
        for i, r in enumerate(self.q_reads(1, aXB, aWB)): g.setdefault(i + (1 if i > 0 else 0) * 0, []).append(r)
        if p1:
            nl = sum(1 for x in p1 if x.startswith('buffer_load'))
            if nl <= 6: self.spread(g, [x for x in p1 if x != 's_nop 0'], 19, 2, 31)
            else: self.spread(g, [x for x in p1 if x != 's_nop 0'], 1, len_step(p1, 30), 31)
        if d1: self.defer(g, d1, 0, 31)
        g = self.qabl(g)
        self.stream(self.q_mfmas(aXA, aWA, first=first), g)
        self.vmwait(wait_tag, ' lgkmcnt(0)')
        if 'B' not in self.c.abl: e('s_barrier')
        g = {}
        if not last:
            for x in [f's_mov_b32 s{sDelta}, 49152', f's_cmp_eq_u32 s{sBase}, {LDS_Q0+2*49152}', f's_cselect_b32 s{sDelta}, {(-98304) & 0xffffffff:#x}, s{sDelta}']: e(x)
            upd = [f'v_add_u32 v{r}, s{sDelta}, v{r}' for r in list(range(vXr, vXr+2)) + list(range(vWr, vWr+8))]
            for i, u in enumerate(upd): g.setdefault(i//2, []).append(u)
            for i, r in enumerate(self.q_reads(0, aXA, aWA)): g.setdefault(5 + i, []).append(r)
            g.setdefault(0, []).insert(0, f's_mov_b32 s{sPB}, s{sBase}')
            g.setdefault(0, []).insert(1, f's_add_u32 s{sBase}, s{sBase}, s{sDelta}')
        else:
            for i, r in enumerate(self.k_reads(0).values()): g.setdefault(2 + i, []).append(r)
        if p2: self.spread(g, [x for x in p2 if x != 's_nop 0'], 1, len_step(p2, 30), 31)
        if d2: self.defer(g, d2, 6, 31)
        g = self.qabl(g)
        self.stream(self.q_mfmas(aXB, aWB), g)

    def qabl(self, g):
        ab = self.c.abl
        out = {}
        for k, v in g.items():
            out[k] = [x for x in v if not (('D' in ab and x.startswith('buffer_load')) or ('R' in ab and x.startswith('ds_read')))]
        return out
    def q_phase(self):
        e = self.e
        self.vmwait('q0')
        e(f'''s_cmp_lg_u32 s{sW}, 0
s_cbranch_scc1 L_nonce2
v_or_b32 v{vT}, v{vNON}, v{vNON+1}
v_cmp_eq_u32 vcc, 0, v{vT}
v_mov_b32 v{vT+10}, s{sPB}
v_mov_b32 v{vT+11}, s{sDelta}
v_cndmask_b32 v{vNON}, v{vNON}, v{vT+10}, vcc
v_cndmask_b32 v{vNON+1}, v{vNON+1}, v{vT+11}, vcc
v_mov_b32 v{vT}, 0
s_mov_b64 exec, 1
ds_write_b64 v{vT}, {vr(vNON,2)}
s_mov_b64 exec, -1
s_waitcnt lgkmcnt(0)''')
        self.p.label('L_nonce2')
        e('s_barrier')
        e(f'v_mov_b32 v{vT}, 0')
        e(f'ds_read_b64 {vr(vNON,2)}, v{vT}')
        e(f's_mov_b32 s{sRedo}, 0') if False else None
        self.stamp()
        e(f's_mov_b32 s{sBase}, {LDS_Q0}')
        for r in self.q_reads(0, aXA, aWA): e(r)
        e(f's_mov_b32 s{sPB}, {LDS_Q0+2*49152}')
        dk = self.deferred_kv(); dw = self.deferred_wo()
        self.q_chunk(0, first=True, p1=self.qdma('qa', base=sPB) + self.advance_kch(), p2=self.qdma('qb', base=sPB, half=0), wait_tag='q1', d1=dk[:52], d2=dk[52:])
        e(f's_mov_b32 s{sCnt}, 5')
        e('.p2align 4')
        self.p.label('L_q')
        self.q_chunk(1, p1=self.qdma('qb', base=sPB, half=1) + self.advance_kch(), p2=self.qdma('qc', base=sPB, half=0), wait_tag='@Q')
        e(f's_sub_u32 s{sCnt}, s{sCnt}, 1\ns_cmp_lg_u32 s{sCnt}, 0\ns_cbranch_scc1 L_q')
        self.q_chunk(6, p1=self.qdma('q8', base=sPB, half=1), p2=self.kv_dma(0, doV=False) + self.kv_dma(1), wait_tag='@Q6', d1=dw[:56], d2=dw[56:75])
        self.q_chunk(7, p1=self.kv_dma(2), p2=self.kv_dma(3), wait_tag='q8', d1=dw[75:])
        self.q_chunk(8, wait_tag='st0', last=True)
        self.stamp()
        e('s_nop 7')
        slots = []
        it = iter(slots)
        for t in range(4):
            for qb in range(4):
                grp = next(it, [])
                for x in grp[:-1]: e(x)
                pend_load = grp[-1:]
                X = acc(qb, 2*t); Y = acc(qb, 2*t+1)
                for r in (X, X+2, Y, Y+2):
                    e(f'v_pk_mul_f32 {vr(r,2)}, {vr(r,2)}, {sr(sScale,2)}')
                for x in pend_load: e(x)
                T = vT + 4*(qb % 2)
                e(f'v_cvt_pk_bf16_f32 v{T}, v{X}, v{X+1}')
                e(f'v_cvt_pk_bf16_f32 v{T+1}, v{X+2}, v{X+3}')
                e(f'v_cvt_pk_bf16_f32 v{T+2}, v{Y}, v{Y+1}')
                e(f'v_cvt_pk_bf16_f32 v{T+3}, v{Y+2}, v{Y+3}')
                e('s_nop 0')
                e(f'v_permlane32_swap_b32 v{T}, v{T+2}')
                e(f'v_permlane32_swap_b32 v{T+1}, v{T+3}')
                e('s_nop 0')
                e(f'v_permlane16_swap_b32 v{T}, v{T+2}')
                e(f'v_permlane16_swap_b32 v{T+1}, v{T+3}')
                for i in range(4): e(f'v_accvgpr_write_b32 a{aQ+(qb*4+t)*4+i}, v{T+i}')
        for grp in it:
            for x in grp[:-1]: e(x)
            e('s_nop 0'); e(grp[-1])

    def wo_warm(self):
        e = []
        if self.c.mapping == 'A':
            e += [f's_add_u32 s{sT2}, s{sHH}, 4']
        else:
            e += [f's_and_b32 s{sT2}, s{sB_}, 3', f's_lshl_b32 s{sT2}, s{sT2}, 1', f's_add_u32 s{sT2}, s{sT2}, s{sMH}']
        e += [f's_and_b32 s{sT2}, s{sT2}, 7', f's_mul_i32 s{sT2}, s{sT2}, {128*1152}', f's_add_u32 s{sWOs}, s{sT2}, s{sWOo}', f's_mov_b32 s{sWOm}, {DUMMY_LDS}']
        for k in range(3):
            l = self.wo_loads3(k, 'warm')
            e += [l[0], 's_nop 0'] + l[1:]
        return e

    def qk_mfmas(self, qb, sbuf, cinit):
        m = []
        for u in range(2):
            d = vr(sbuf + 4*u, 4)
            for t in range(4):
                m.append(f'v_mfma_f32_16x16x32_bf16 {d}, {ar(aK+(u*4+t)*4,4)}, {ar(aQ+(qb*4+t)*4,4)}, {cinit if t == 0 else d}')
        return m
    def pv_mfmas(self, qb, pbuf, first):
        m = []
        for tau in range(8):
            d = vr(acc(qb, tau), 4)
            m.append(f'v_mfma_f32_16x16x32_bf16 {d}, {ar(aV+tau*4,4)}, {vr(pbuf,4)}, {"0" if first else d}')
        d = vr(LAC + 4*qb, 4)
        m.append(f'v_mfma_f32_16x16x32_bf16 {d}, {ar(aONE,4)}, {vr(pbuf,4)}, {"0" if first else d}')
        return m
    def wo_loads3(self, k, tag):
        o = [f's_add_u32 m0, s{sWOm}, {3072*k}']
        for i in range(3*k, 3*k+3):
            o.append(f'buffer_load_dwordx4 v{vWOd+i}, {sr(sWO,4)}, s{sWOs} offen offset:{1024*(i%3)} {self.c.wo_flags} lds ;@{tag}')
        return o
    def head_of(self, gam):
        if gam == 0: return [f's_mov_b32 s{sT2}, s{sHH}']
        return [f's_add_u32 s{sT2}, s{sRot}, {gam-1}', f's_sub_u32 s{sT3}, s{sT2}, 7', f's_cmp_ge_u32 s{sT2}, 7', f's_cselect_b32 s{sT2}, s{sT3}, s{sT2}',
                f's_add_u32 s{sT2}, s{sT2}, s{sHH}', f's_add_u32 s{sT2}, s{sT2}, 1', f's_and_b32 s{sT2}, s{sT2}, 7']
    def wo_setup(self, gam):
        return self.head_of(gam) + [f's_mul_i32 s{sT2}, s{sT2}, {128*1152}',
                f's_add_u32 s{sWOs}, s{sT2}, s{sWOo}', f's_mul_i32 s{sT3}, s{sW}, 9216', f's_add_u32 s{sWOm}, s{sT3}, {G_BASE[gam % 4]}']
    def wo_dma(self, gam):
        o = self.wo_setup(gam)
        for k in range(3):
            l = self.wo_loads3(k, f'wo{gam}')
            o += [l[0], 's_nop 0'] + l[1:]
        return o

    def unit(self, n, sm=True, pv=True, first_pv=False, skipv=False, wo1=None, pre=None, tail=False):
        e = self.e
        qb = n % 4; tile = n // 4
        if qb == 0:
            if tail and tile + 1 > 32: e('s_waitcnt lgkmcnt(0)')
            else: self.vmwait(f'st{(tile+1) % 4}', ' lgkmcnt(0)')
            e('s_barrier')
        mf = self.qk_mfmas(qb, SB + 8*(n % 2), vr(NM + 4*qb, 4)) if not (tail and n >= 128) else []
        if pv: mf += self.pv_mfmas((n-2) % 4, PB + 4*((n-2) % 2), first_pv)
        N = len(mf)
        g = {}
        def put(i, x): g.setdefault(min(i, N-1), []).append(x)
        if pre:
            for x in pre: put(0, x)
        if sm and not (tail and n - 1 > 127):
            s = SB + 8*((n-1) % 2); pb = PB + 4*((n-1) % 2)
            if N >= 17: eg = [0, 2, 4, 6, 8, 10, 12, 14]; cg = [3, 7, 11, 15]
            elif N == 9: eg = [0, 1, 2, 3, 4, 5, 6, 7]; cg = [2, 4, 6, 8]
            else: eg = [0, 1, 2, 3, 4, 5, 6, 6]; cg = [3, 5, 7, 7]
            for i in range(8): put(eg[i], f'v_exp_f32 v{s+i}, v{s+i}')
            for i in range(4): put(cg[i], f'v_cvt_pk_bf16_f32 v{pb+i}, v{s+2*i}, v{s+2*i+1}')
        if not self.c.kvspread:
            if qb == 0 and not (tail and tile + 4 > 32):
                d = [x for x in self.kv_dma(tile + 4) if x != 's_nop 0']
                pos = [0, 1, 5, 8, 9, 13, N-1, N-1] if N >= 17 else [0, 1, 2, 3, 4, 5, N-1, N-1]
                for x, gi in zip(d, pos): put(gi, x)
        elif not (tail and tile + 4 > 32):
            ld = self.kv_one(tile + 4, qb)
            gi = {0: 5, 1: 5, 2: 9, 3: 13}[qb] if N >= 17 else {0: 5, 1: 6, 2: 5, 3: 5}[qb]
            put(gi-1, ld[0]); put(gi, ld[1])
            if qb == 3:
                put(N-1, f's_mov_b32 s{sVo}, s{sKVo}'); put(N-1, f's_add_u32 s{sKVo}, s{sKVo}, 8192')
        if wo1 is not None:
            ld = self.wo_one(wo1, 'wop')
            gi = {0: 13, 1: 1, 2: 13, 3: 16}[qb] if self.c.kvspread else {0: 16, 1: 1, 2: 13, 3: 16}[qb]
            put(gi-1, ld[0]); put(gi, ld[1])
        if qb == 3 and not (tail and tile + 1 > 31):
            kr = self.k_reads(tile + 1)
            for k, gi in {(0,0):1, (0,1):1, (0,2):3, (0,3):3, (1,0):5, (1,1):5, (1,2):7, (1,3):9}.items(): put(gi, kr[k])
        if qb in (1, 2) and pv and not skipv and not (tail and tile > 31):
            vrd = self.v_reads(tile)
            pl = {(0,0):9, (0,1):9, (1,0):11, (1,1):11, (2,0):13, (2,1):13, (3,0):15, (3,1):16, (4,0):16} if qb == 1 else \
                 {(4,1):1, (5,0):1, (5,1):3, (6,0):3, (6,1):5, (7,0):5, (7,1):7}
            for k, gi in pl.items(): put(gi, vrd[k])
        if tail and self.c.tailwo:
            plan = {118: (0, [0,1,2]), 119: (0, [3,4,5]), 120: (0, [6,7,8]), 121: (1, [0,1]), 122: (1, [2,3,4]), 123: (1, [5,6]),
                    124: (1, [7,8]), 125: (2, [0,1]), 126: (2, [2,3,4]), 127: (2, [5,6,7,8]), 128: (3, [0,1,2,3,4]), 129: (3, [5,6,7,8])}
            free = {0: [1, 9, 13, 16], 1: [1, 5], 2: [9, 13, 16], 3: [11, 13, 16]}
            gam, idxs = plan[n]
            if idxs[0] == 0:
                for x in self.wo_setup(gam): put(0, x)
            fr = free[qb] if N >= 17 else list(range(1, 9))
            if N >= 17 and tile + 4 > 32 and qb == 0: fr = [1, 5, 9, 13, 16]
            if n == 127: fr = [1, 5, 9, 13]
            if n == 123: fr = [11, 13, 16]
            for i, gi in zip(idxs, fr):
                ld = self.wo_one(i, f'wo{gam}')
                put(gi-1, ld[0]); put(gi, ld[1])
            assert len(idxs) <= len(fr), n
        abl = self.c.abl
        if abl and n >= 6:
            for k in list(g):
                keep = []
                for x in g[k]:
                    if 'd' in abl and x.startswith('buffer_load'): continue
                    if 'l' in abl and x.startswith('ds_read'): continue
                    if 'e' in abl and x.startswith('v_exp'): continue
                    if 'c' in abl and x.startswith('v_cvt'): continue
                    keep.append(x)
                g[k] = keep
            if 'o' in abl and pv: mf = mf[:-1]; g = {k: v for k, v in g.items() if k < len(mf)} if False else g;
            if 'o' in abl and pv:
                last = g.pop(16, [])
                g.setdefault(15, []).extend(last)
        self.stream(mf, g)

    def attn_prologue(self):
        e = self.e
        e('s_waitcnt lgkmcnt(0)')
        for qb in range(4):
            d = vr(SB + 4*qb, 4)
            for t in range(4):
                e(f'v_mfma_f32_16x16x32_bf16 {d}, {ar(aK+t*4,4)}, {ar(aQ+(qb*4+t)*4,4)}, {"0" if t == 0 else d}')
        e('s_nop 7')
        for qb in range(4):
            s = SB + 4*qb; T = vT + 2*qb
            e(f'v_max3_f32 v{T}, v{s}, v{s+1}, v{s+2}')
            e(f'v_max_f32 v{T}, v{T}, v{s+3}')
            e(f'v_mov_b32 v{T+1}, v{T}')
        e('s_nop 0')
        for qb in range(4): e(f'v_permlane32_swap_b32 v{vT+2*qb}, v{vT+2*qb+1}')
        for qb in range(4): e(f'v_max_f32 v{vT+2*qb}, v{vT+2*qb}, v{vT+2*qb+1}')
        for qb in range(4): e(f'v_mov_b32 v{vT+2*qb+1}, v{vT+2*qb}')
        e('s_nop 0')
        for qb in range(4): e(f'v_permlane16_swap_b32 v{vT+2*qb}, v{vT+2*qb+1}')
        for qb in range(4): e(f'v_max_f32 v{vT+2*qb}, v{vT+2*qb}, v{vT+2*qb+1}')
        for qb in range(4):
            for i in range(4): e(f'v_sub_f32 v{NM+4*qb+i}, 0, v{vT+2*qb}')
        e('s_nop 1')

    def attention(self):
        e = self.e
        self.attn_prologue()
        self.stamp()
        self.p.label('L_att_units')
        self.unit(0, sm=False, pv=False)
        for r in self.v_reads(0).values(): e(r)
        self.unit(1, pv=False)
        e('s_waitcnt lgkmcnt(0)')
        self.unit(2, first_pv=True, skipv=True)
        self.unit(3, first_pv=True)
        self.unit(4, first_pv=True)
        self.unit(5, first_pv=True)
        e(f's_mov_b32 s{sCnt}, 7')
        e('.p2align 4')
        self.p.label('L_att')
        if self.c.mapping == 'A': warm = [f's_add_u32 s{sT1}, s{sHH}, 4']
        else: warm = [f's_and_b32 s{sT1}, s{sB_}, 3', f's_lshl_b32 s{sT1}, s{sT1}, 1', f's_add_u32 s{sT1}, s{sT1}, s{sMH}']
        pre = [f's_sub_u32 s{sT0}, 7, s{sCnt}', f's_add_u32 s{sT2}, s{sHH}, s{sT0}'] + warm + [
               f's_cmp_eq_u32 s{sT0}, 2', f's_cselect_b32 s{sT2}, s{sT1}, s{sT2}',
               f's_and_b32 s{sT2}, s{sT2}, 7', f's_mul_i32 s{sT2}, s{sT2}, {128*1152}',
               f's_add_u32 s{sWOs}, s{sT2}, s{sWOo}', f's_mul_i32 s{sT3}, s{sT0}, 36864', f's_mul_i32 s{sT1}, s{sW}, 9216',
               f's_add_u32 s{sT3}, s{sT3}, s{sT1}', f's_add_u32 s{sWOm}, s{sT3}, {G_BASE[0]}',
               f's_cmp_lt_u32 s{sT0}, 2', f's_cselect_b32 s{sWOm}, s{sWOm}, {DUMMY_LDS}',
               f's_cmp_lt_u32 s{sT0}, {3 if self.c.warm_wo else 2}', f's_cselect_b32 s{sWOs}, s{sWOs}, 4718592']
        won = {7: 0, 8: 1, 10: 2, 11: 3, 12: 4, 14: 5, 16: 6, 18: 7, 20: 8}
        for n in range(6, 22):
            self.unit(n, pre=pre if (n == 6 and self.c.woloop) else None, wo1=won.get(n) if self.c.woloop else None)
        e(f's_sub_u32 s{sCnt}, s{sCnt}, 1\ns_cmp_lg_u32 s{sCnt}, 0\ns_cbranch_scc1 L_att')
        for n in range(118, 130):
            self.unit(n, tail=True)
            if n == 128: e('s_nop 1')
            if n == 127:
                e(f's_lshl_b32 s{sT0}, s{sH}, 16\ns_lshl_b32 s{sT1}, s{sW}, 14\ns_add_u32 s{sOo}, s{sT0}, s{sT1}')
                self.norm_store(0)
            if n == 128: self.norm_store(1)

    def poll(self, name, nl, vaddr):
        e = self.e
        A, B = vT+10, vT+12
        def chk(r):
            return f'''v_cmp_eq_u32 vcc, v{r}, v{vNON}
v_cmp_eq_u32 s[{sT0}:{sT1}], v{r+1}, v{vNON+1}
s_and_b64 vcc, vcc, s[{sT0}:{sT1}]
s_cmp_eq_u32 vcc_lo, {(1 << nl) - 1}
s_cbranch_scc1 L_{name}_ok'''
        e(f's_mov_b32 s{sT2}, 0')
        e(f'global_load_dwordx2 {vr(A,2)}, v{vaddr}, s[18:19] sc1 ;@x')
        self.p.label(f'L_{name}_poll')
        e(f'global_load_dwordx2 {vr(B,2)}, v{vaddr}, s[18:19] sc1 ;@x')
        e('s_waitcnt vmcnt(1)')
        e(chk(A))
        e(f'global_load_dwordx2 {vr(A,2)}, v{vaddr}, s[18:19] sc1 ;@x')
        e('s_waitcnt vmcnt(1)')
        e(chk(B))
        e(f's_add_u32 s{sT2}, s{sT2}, 1\ns_cmp_lt_u32 s{sT2}, 0x40000\ns_cbranch_scc1 L_{name}_poll')
        self.p.label(f'L_{name}_ok')

    def norm_store(self, qb):
        e = self.e
        R = vT + 4
        e(f'v_rcp_f32 v{R}, v{LAC+4*qb}')
        e('s_nop 0')
        e(f'v_mov_b32 v{R+1}, v{R}')
        for t in range(4):
            X = acc(qb, 2*t); Y = acc(qb, 2*t+1)
            for r in (X, X+2, Y, Y+2):
                e(f'v_pk_mul_f32 {vr(r,2)}, {vr(r,2)}, {vr(R,2)}')
            T = vPK + 4*t
            e(f'v_cvt_pk_bf16_f32 v{T}, v{X}, v{X+1}')
            e(f'v_cvt_pk_bf16_f32 v{T+1}, v{X+2}, v{X+3}')
            e(f'v_cvt_pk_bf16_f32 v{T+2}, v{Y}, v{Y+1}')
            e(f'v_cvt_pk_bf16_f32 v{T+3}, v{Y+2}, v{Y+3}')
            e(f's_add_u32 s{sT0}, s{sOo}, {(qb*4+t)*1024}')
            e(f'buffer_store_dwordx4 {vr(T,4)}, v{vL16}, {sr(sOW,4)}, s{sT0} offen {self.c.st_flags} ;@ost')
        e(f's_cmp_lg_u32 s{sMH}, {qb >> 1}\ns_cbranch_scc1 L_own_skip{qb}')
        for t in range(4):
            for i in range(4):
                e(f'v_accvgpr_write_b32 a{aOB + (t*2 + (qb & 1))*4 + i}, v{vPK+4*t+i}')
        self.p.label(f'L_own_skip{qb}')

    def publish_o(self):
        e = self.e
        e('s_nop 4')
        self.norm_store(2)
        e(f'v_mov_b32 v{vT+6}, {LIMIT:#x}')
        e(f'v_cmp_nge_f32 vcc, v{vT+6}, v{LAC}')
        for qb in range(1, 4):
            e(f'v_cmp_nge_f32 s[{sT0}:{sT1}], v{vT+6}, v{LAC+4*qb}')
            e(f's_or_b64 vcc, vcc, s[{sT0}:{sT1}]')
        e(f'''s_cmp_lg_u64 vcc, 0
s_cselect_b32 s{sT2}, 1, 0
s_cmp_eq_u32 s{sRedo}, 0
s_cselect_b32 s{sT2}, s{sT2}, 0
v_mov_b32 v{vT+6}, s{sT2}
s_lshl_b32 s{sT0}, s{sW}, 2
s_add_u32 s{sT0}, s{sT0}, {LDS_FLAG}
v_mov_b32 v{vT+7}, s{sT0}
ds_write_b32 v{vT+7}, v{vT+6}''')
        self.norm_store(3)
        e(f'''s_lshl_b32 s{sT0}, s{sB_}, 5
s_add_u32 s{sT1}, s{sT0}, s{sH}
s_lshl_b32 s{sT1}, s{sT1}, 2
s_add_u32 s{sT1}, s{sT1}, s{sW}
s_lshl_b32 s{sT1}, s{sT1}, 7
s_add_u32 s{sT1}, s{sT1}, {FLG_O}
v_mov_b32 v{vT}, s{sT1}
s_lshl_b32 s{sT1}, s{sHG}, 3
s_add_u32 s{sT0}, s{sT0}, s{sT1}
s_lshl_b32 s{sT0}, s{sT0}, 2
s_add_u32 s{sT0}, s{sT0}, s{sW}
s_lshl_b32 s{sT0}, s{sT0}, 7
s_add_u32 s{sT0}, s{sT0}, {FLG_O}
v_lshlrev_b32 v{vT+1}, 5, v{vL16}
v_add_u32 v{vT+1}, s{sT0}, v{vT+1}''')
        self.stamp()

    def o_sync(self):
        e = self.e
        for gam in range(1, 8):
            for x in self.head_of(gam): e(x)
            e(f's_lshl_b32 s{sT3}, s{sHG}, 3\ns_add_u32 s{sT3}, s{sT2}, s{sT3}\ns_lshl_b32 s{sT3}, s{sT3}, 16\ns_add_u32 s{sOS+gam}, s{sT3}, s{sOo}')
            if gam >= 4:
                e(f's_mul_i32 s{sT2}, s{sT2}, {128*1152}\ns_add_u32 s{sWS+gam-4}, s{sT2}, s{sWOo}')
        e(f's_mul_i32 s{sWOm}, s{sW}, 9216')
        e(f's_lshl_b32 s{sT0}, s{sHG}, 2\ns_add_u32 s{sT0}, s{sT0}, s{sW}\ns_mul_i32 s{sT0}, s{sT0}, 18432\ns_mov_b32 s{sT1}, 0x10000000')
        for own in range(4):
            e(f's_cmp_eq_u32 s{sHG}, {own}\ns_cselect_b32 s{sSend+own}, s{sT1}, s{sT0}')
        self.vmwait('ost')
        self.stamp()
        e('s_mov_b64 exec, 1')
        e(f'global_store_dwordx2 v{vT}, {vr(vNON,2)}, s[18:19] sc1 ;@x')
        e('s_mov_b64 exec, 0xff')
        self.poll('o', 8, vT+1)
        e('s_mov_b64 exec, -1')
        self.stamp()

    def o_load(self, gam, t, qx):
        r = aOB + ((gam % 4)*8 + t*2 + qx)*4
        va = vL16 if qx == 0 else vT+2
        return f'buffer_load_dwordx4 {ar(r,4)}, v{va}, {sr(sOW,4)}, s{sOS+gam} offen offset:{t*1024} {self.c.ld_flags} ;@o{gam}t{t}'
    def w_load(self, gam, i):
        return [f's_add_u32 m0, s{sWOm}, {G_BASE[gam % 4] + 3072*(i//3)}',
                f'buffer_load_dwordx4 v{vWOd+i}, {sr(sWO,4)}, s{sWS+gam-4} offen offset:{1024*(i%3)} {self.c.wo_flags} lds ;@wo{gam}']

    def ob_loads(self, gam):
        o = self.head_of(gam) + [f's_lshl_b32 s{sT3}, s{sHG}, 3',
             f's_add_u32 s{sT2}, s{sT2}, s{sT3}', f's_lshl_b32 s{sT2}, s{sT2}, 16', f's_add_u32 s{sT2}, s{sT2}, s{sOo}']
        for t in range(4):
            for qx in range(2):
                r = aOB + ((gam % 4)*8 + t*2 + qx)*4
                va = vL16 if qx == 0 else vT+2
                o.append(f'buffer_load_dwordx4 {ar(r,4)}, v{va}, {sr(sOW,4)}, s{sT2} offen offset:{t*1024} {self.c.ld_flags} ;@o{gam}')
        return o

    def o_phase(self):
        e = self.e
        e(f'''s_lshl_b32 s{sT0}, s{sW}, 14
s_lshl_b32 s{sT1}, s{sMH}, 13
s_add_u32 s{sOo}, s{sT0}, s{sT1}
v_add_u32 v{vT+2}, 4096, v{vL16}''')
        for k in range(4): e(f'v_add_u32 v{vT+4+k}, {G_BASE[k]}, v{vWOr}')
        def wbuf(gam, t): return 64 if (gam*4 + t) % 2 == 0 else 0
        def wreads(gam, t):
            a = vT + 4 + gam % 4
            return [f'ds_read_b64_tr_b16 {ar(wbuf(gam,t)+4*nu+2*jj,2)}, v{a} offset:{t*9216 + jj*4608 + nu*32}' for nu in range(9) for jj in range(2)]
        self.vmwait('wo0', ' lgkmcnt(0)')
        e('s_barrier')
        e(f'v_mov_b32 v{vT+8}, {LDS_FLAG}')
        e(f'ds_read_b128 {vr(vT+12,4)}, v{vT+8}')
        w0 = wreads(0, 0)
        for x in w0[:14]: e(x)
        e('s_waitcnt lgkmcnt(14)')
        e(f'v_or_b32 v{vT+12}, v{vT+12}, v{vT+13}\nv_or3_b32 v{vT+12}, v{vT+12}, v{vT+14}, v{vT+15}\ns_nop 0\nv_readfirstlane_b32 s{sT0}, v{vT+12}')
        for x in w0[14:]: e(x)
        e(f's_cmp_lg_u32 s{sT0}, 0\ns_cbranch_scc1 L_redo')
        Q = []
        def ol(gam, avail):
            for t in range(4):
                for qx in range(2): Q.append((avail, [self.o_load(gam, t, qx)]))
        def wl(gam, avail):
            for i in range(9): Q.append((avail, self.w_load(gam, i)))
        ol(2, (1,0)); ol(3, (1,0)); wl(4, (1,0)); ol(4, (1,0)); wl(5, (1,3)); ol(5, (2,0)); wl(6, (2,3)); ol(6, (3,0)); wl(7, (3,3)); ol(7, (4,0))
        if 'O' in self.c.abl: Q = [x for x in Q if len(x[1]) != 1]
        if 'W' in self.c.abl: Q = [x for x in Q if len(x[1]) == 1]
        def lastreads(nu):
            a = vT + 4 + 7 % 4
            base = 64 + 16*(nu % 2)
            return [f'ds_read_b64_tr_b16 {ar(base+4*t+2*jj,2)}, v{a} offset:{t*9216 + jj*4608 + nu*32}' for t in range(4) for jj in range(2)]
        for gam in range(7):
            if gam == 1:
                self.o_sync()
                self.stamp('O')
                for t in range(4):
                    for qx in range(2): e(self.o_load(1, t, qx))
            for t in range(4):
                if gam > 0:
                    self.vmwait(f'o{gam}t{t}')
                    if t == 0: self.stamp('O')
                if t == 3:
                    self.vmwait(f'wo{gam+1}', ' lgkmcnt(0)')
                    e('s_barrier')
                mf = []; g = {}
                nxt = (gam, t+1) if t < 3 else (gam+1, 0)
                for nu in range(9):
                    for qx in range(2):
                        d = vr(OACC + (nu*2+qx)*4, 4)
                        first = (gam == 0 and t == 0)
                        b = aOB + ((gam % 4)*8 + t*2 + qx)*4
                        mf.append(f'v_mfma_f32_16x16x32_bf16 {d}, {ar(wbuf(gam,t)+4*nu,4)}, {ar(b,4)}, {"0" if first else d}')
                rd = wreads(*nxt) if nxt != (7, 0) else lastreads(0)
                for i, x in enumerate(rd): g.setdefault(i//2, []).append(x)
                if gam >= 1:
                    for gi in (10, 12, 14, 16):
                        if Q and Q[0][0] <= (gam, t):
                            _, ld = Q.pop(0)
                            if len(ld) == 2: g.setdefault(gi-1, []).append(ld[0])
                            g.setdefault(gi, []).append(ld[-1])
                self.stream(mf, g)
        self.vmwait('o7t3')
        self.stamp('O')
        def send(nu, qx):
            own = qx + 2*(nu >= 5)
            return [f's_add_u32 s{sT0+qx}, s{sSend+own}, {(qx*9 + nu)*1024}',
                    f'buffer_store_dwordx4 {vr(OACC + (nu*2+qx)*4, 4)}, v{vL16}, {sr(sPT,4)}, s{sT0+qx} offen {self.c.st_flags} ;@pst']
        for nu in range(9):
            mf = []; g = {}
            for t in range(4):
                for qx in range(2):
                    d = vr(OACC + (nu*2+qx)*4, 4)
                    b = aOB + ((7 % 4)*8 + t*2 + qx)*4
                    mf.append(f'v_mfma_f32_16x16x32_bf16 {d}, {ar(64 + 16*(nu % 2) + 4*t, 4)}, {ar(b,4)}, {d}')
            if nu < 8:
                for i, x in enumerate(lastreads(nu+1)): g.setdefault(i//2, []).append(x)
            if nu > 0:
                for qx in range(2):
                    sx = send(nu-1, qx)
                    g.setdefault(4 + 2*qx, []).append(sx[0]); g.setdefault(5 + 2*qx, []).append(sx[1])
            self.stream(mf, g)
        e('s_nop 7')
        for qx in range(2):
            for x in send(8, qx): e(x)
        assert not Q, Q
        self.stamp('O')
        self.stamp()

    def final(self):
        e = self.e
        e(f'''s_lshl_b32 s{sT0}, s{sB_}, 1
s_add_u32 s{sT0}, s{sT0}, s{sMH}
s_lshl_b32 s{sT0}, s{sT0}, 2
s_add_u32 s{sT0}, s{sT0}, s{sNQ}
s_lshl_b32 s{sT0}, s{sT0}, 4
s_add_u32 s{sT0}, s{sT0}, s{sW}
s_lshl_b32 s{sT0}, s{sT0}, 7
s_add_u32 s{sT0}, s{sT0}, {FLG_P}
s_lshl_b32 s{sT1}, s{sHG}, 9
s_add_u32 s{sT1}, s{sT1}, s{sT0}
v_mov_b32 v{vT}, s{sT1}
v_lshlrev_b32 v{vT+1}, 5, v{vL16}
v_add_u32 v{vT+1}, s{sT0}, v{vT+1}''')
        T = vT + 8
        e(f'''v_bfe_u32 v{T}, v{vL16}, 4, 4
v_lshrrev_b32 v{T+1}, 8, v{vL16}
s_and_b32 s{sT0}, s{sHG}, 1
s_lshl_b32 s{sT3}, s{sW}, 6
s_lshl_b32 s{sCnt}, s{sMH}, 5
s_add_u32 s{sT3}, s{sT3}, s{sCnt}
s_lshl_b32 s{sCnt}, s{sT0}, 4
s_add_u32 s{sT3}, s{sT3}, s{sCnt}
v_add_u32 v{T}, s{sT3}, v{T}
v_mul_u32_u24 v{T}, 1152, v{T}
v_lshl_add_u32 v{T}, v{T+1}, 3, v{T}
s_mul_i32 s{sOo}, s{sW}, 18432
s_mul_i32 s{sWOs}, s{sNQ}, 288''')
        e('s_waitcnt vmcnt(0)')
        self.stamp()
        e('s_mov_b64 exec, 1')
        e(f'global_store_dwordx2 v{vT}, {vr(vNON,2)}, s[18:19] sc1')
        e('s_mov_b64 exec, 0xf')
        self.poll('p', 4, vT+1)
        e('s_mov_b64 exec, -1')
        self.stamp()
        for own in range(4):
            qx = own & 1; nus = list(range(5, 9) if own >> 1 else range(5))
            nxt = f'L_fin_v{own+1}' if own < 3 else None
            self.p.label(f'L_fin_v{own}')
            if nxt: e(f's_cmp_lg_u32 s{sHG}, {own}\ns_cbranch_scc1 {nxt}')
            srcs = [s_ for s_ in range(4) if s_ != own]
            for k, nu in enumerate(nus):
                for j, src in enumerate(srcs):
                    r = 80 + (j*5 + k)*4
                    e(f's_add_u32 s{sT3}, s{sOo}, {src*4*18432 + (qx*9+nu)*1024}')
                    e(f'buffer_load_dwordx4 {vr(r,4)}, v{vL16}, {sr(sPT,4)}, s{sT3} offen {self.c.ld_flags}')
            for k, nu in enumerate(nus):
                e(f's_waitcnt vmcnt({3*(len(nus)-1-k) + k})')
                a = OACC + (nu*2+qx)*4
                for i in range(4):
                    e(f'v_add_f32 v{a+i}, v{a+i}, v{80+k*4+i}')
                    e(f'v_add_f32 v{100+k*4+i}, v{100+k*4+i}, v{120+k*4+i}')
                for i in range(4):
                    e(f'v_add_f32 v{a+i}, v{a+i}, v{100+k*4+i}')
                e(f'v_cvt_pk_bf16_f32 v{144+2*k}, v{a}, v{a+1}')
                e(f'v_cvt_pk_bf16_f32 v{144+2*k+1}, v{a+2}, v{a+3}')
                e(f'buffer_store_dwordx2 {vr(144+2*k,2)}, v{T}, {sr(sOUT,4)}, s{sWOs} offen offset:{32*nu} {self.c.out_flags}')
            if nxt: e('s_branch L_fin')

    def redo(self):
        e = self.e
        self.p.label('L_redo')
        e('s_waitcnt vmcnt(0) lgkmcnt(0)')
        e('s_barrier')
        M = vT + 8
        e(f'v_mov_b32 v{M+4}, 0x3f803f80')
        for i in range(4): e(f'v_accvgpr_write_b32 a{aONE+i}, v{M+4}')
        for qb in range(4): e(f'v_mov_b32 v{M+qb}, 0xff800000')
        e(f's_mov_b32 s{sKVo}, s{sKVl}\ns_mov_b32 s{sCnt}, 32')
        self.p.label('L_redo_max')
        nt = ' nt' if self.c.nt else ''
        e(f's_mov_b32 m0, s{sKVl}\ns_nop 0')
        for p_ in range(2): e(f'buffer_load_dwordx4 v{vKVd+p_}, {sr(sK,4)}, s{sKVo} offen offset:{1024*p_}{nt} lds ;@x')
        e(f's_add_u32 s{sKVo}, s{sKVo}, 8192')
        e('s_waitcnt vmcnt(0)\ns_barrier')
        for x in self.k_reads(0).values(): e(x)
        e('s_waitcnt lgkmcnt(0)')
        for qb in range(4):
            for u in range(2):
                d = vr(ACC + (qb*2+u)*4, 4)
                for t in range(4):
                    e(f'v_mfma_f32_16x16x32_bf16 {d}, {ar(aK+(u*4+t)*4,4)}, {ar(aQ+(qb*4+t)*4,4)}, {"0" if t == 0 else d}')
        e('s_nop 7\ns_barrier')
        for qb in range(4):
            r = ACC + qb*8
            for i in range(0, 8, 2): e(f'v_max3_f32 v{M+qb}, v{M+qb}, v{r+i}, v{r+i+1}')
        e(f's_sub_u32 s{sCnt}, s{sCnt}, 1\ns_cmp_lg_u32 s{sCnt}, 0\ns_cbranch_scc1 L_redo_max')
        T = vT
        for qb in range(4): e(f'v_mov_b32 v{T+2*qb}, v{M+qb}') if False else None
        for qb in range(4):
            e(f'v_mov_b32 v{SB+2*qb}, v{M+qb}\nv_mov_b32 v{SB+2*qb+1}, v{M+qb}')
        e('s_nop 1')
        for qb in range(4): e(f'v_permlane32_swap_b32 v{SB+2*qb}, v{SB+2*qb+1}')
        for qb in range(4): e(f'v_max_f32 v{SB+2*qb}, v{SB+2*qb}, v{SB+2*qb+1}')
        for qb in range(4): e(f'v_mov_b32 v{SB+2*qb+1}, v{SB+2*qb}')
        e('s_nop 1')
        for qb in range(4): e(f'v_permlane16_swap_b32 v{SB+2*qb}, v{SB+2*qb+1}')
        for qb in range(4): e(f'v_max_f32 v{SB+2*qb}, v{SB+2*qb}, v{SB+2*qb+1}')
        for qb in range(4):
            for i in range(4): e(f'v_sub_f32 v{NM+4*qb+i}, 0, v{SB+2*qb}')
        e(f's_mov_b32 s{sKVo}, s{sKVl}')
        for x in self.kv_dma(0, doV=False) + self.kv_dma(1) + self.kv_dma(2) + self.kv_dma(3): e(re.sub(r';@\w+', ';@x', x))
        e('s_waitcnt vmcnt(12)\ns_barrier')
        for x in self.k_reads(0).values(): e(x)
        e(f's_waitcnt lgkmcnt(0)\ns_mov_b32 s{sRedo}, 1\ns_branch L_att_units')

    def dump_q(self):
        e = self.e
        e(f's_lshl_b32 s{sT0}, s{sH}, 16\ns_lshl_b32 s{sT1}, s{sW}, 14\ns_add_u32 s{sT0}, s{sT0}, s{sT1}')
        for f in range(16):
            e(f's_add_u32 s{sT1}, s{sT0}, {f*1024}')
            e(f'buffer_store_dwordx4 {ar(aQ+4*f,4)}, v{vL16}, {sr(sOW,4)}, s{sT1} offen')
        e('s_waitcnt vmcnt(0)')

    def build(self):
        c = self.c
        self.setup()
        self.q_phase()
        if c.stop == 'q':
            self.e('s_nop 4'); self.dump_q()
        else:
            self.attention()
            self.stamp()
            self.publish_o()
            if c.stop != 'attn':
                self.o_phase()
                self.final()
        self.p.label('L_fin')
        if c.stamps:
            self.stamp()
            e = self.e; n = self.nstamp
            e('s_waitcnt lgkmcnt(0) vmcnt(0)')
            e(f's_mul_i32 s{sT0}, s2, {8*16}\ns_add_u32 s{sT0}, s{sT0}, 0x0F000000\nv_mov_b32 v{vT}, s{sT0}')
            e(f's_cmp_lg_u32 s{sW}, 0\ns_cbranch_scc1 L_end\ns_mov_b64 exec, 1')
            for i in range(n):
                e(f'v_mov_b32 v{vT+2}, s{sStamp+2*i}\nv_mov_b32 v{vT+3}, s{sStamp+2*i+1}\nglobal_store_dwordx2 v{vT}, {vr(vT+2,2)}, s[18:19] offset:{8*i}\ns_nop 1')
        self.p.label('L_end')
        self.e('s_endpgm')
        if c.stop not in ('q', 'attn'): self.redo()
        lines = resolve_waits(self.p.lines)
        return lines

def len_step(lst, span):
    n = sum(1 for x in lst if x.startswith('buffer_load'))
    m = sum(1 for x in lst if ' m0,' in x)
    return max(1, (span - m) // max(1, n))

LOOPS = ('L_q', 'L_att', 'L_redo_max')
def make_trace(lines, reps=3):
    labels = {l[:-1]: i for i, l in enumerate(lines) if l.endswith(':')}
    loopd = {}
    for i, l in enumerate(lines):
        t = l.strip().split()
        if t and (t[0].startswith('s_cbranch') or t[0] == 's_branch') and len(t) > 1 and t[1] in LOOPS and labels[t[1]] < i:
            loopd[labels[t[1]]] = i
    trace = []; i = 0
    while i < len(lines):
        if i in loopd:
            b = loopd[i]
            trace += list(range(i, b+1)) * reps
            i = b + 1
        else:
            trace.append(i); i += 1
    return trace

VMOPS = ('buffer_load', 'buffer_store', 'global_load', 'global_store', 'global_atomic', 'buffer_atomic')
def resolve_waits(lines):
    trace = make_trace(lines)
    vneed = {}
    hist = []
    SKIP = {'L_o_w0'}
    skipping = None
    for li in trace:
        l = lines[li]; t = l.strip()
        if t.startswith(VMOPS):
            m = re.search(r';@(\w+)', t)
            tag = m.group(1) if m else ''
            if tag == 'x': continue
            hist.append(tag)
        m = re.search(r'vmcnt\(@(@?\w+)@\)', t)
        if m:
            tag = m.group(1)
            if tag == '@Q':
                n = 12
            elif tag == '@Q6':
                n = 12
            else:
                idx = [i for i, x in enumerate(hist) if x == tag]
                n = len(hist) - 1 - idx[-1] if idx else 63
            n = min(n, 63)
            vneed[li] = min(vneed.get(li, 99), n)
    out = []
    for i, l in enumerate(lines):
        if i in vneed: l = re.sub(r'vmcnt\(@@?\w+@\)', f'vmcnt({vneed[i]})', l)
        out.append(l)
    lines = out
    need = {}; q = []
    for li in trace:
        I = parse(lines[li])
        if I is None: continue
        if I.op == 's_waitcnt':
            for tok in I.ops:
                if tok.startswith('lgkmcnt'):
                    n = int(tok[8:-1]); q = q[len(q)-n:] if 0 < n < len(q) else ([] if n == 0 else q)
            continue
        touched = set(I.r + I.srcC + (I.w if I.cls != 'dsr' else []))
        k = None
        for idx, regs in enumerate(q):
            if regs & touched or (I.cls == 'dsr' and regs & set(I.w)): k = idx
        if k is not None:
            n = min(len(q) - 1 - k, 15)
            need[li] = min(need.get(li, 99), n)
            q = q[len(q)-n:] if n > 0 else []
        if I.cls == 'dsr': q.append(set(I.w))
        elif I.cls == 'dsw': q.append(set())
    out = []
    for i, l in enumerate(lines):
        if i in need: out.append(f'  s_waitcnt lgkmcnt({need[i]})')
        out.append(l)
    return out

HDR = f'''; fused q-proj + attention + o-proj, one workgroup per (batch, head); written with my own generator
; @launch grid=(256,1,1) block=(256,1,1) lds=163840
.amdgcn_target "amdgcn-amd-amdhsa--gfx950"
.text
.globl {KN}
.p2align 8
.type {KN},@function
{KN}:
'''
FTR = f'''
.section .rodata,"a"
.p2align 6
.amdhsa_kernel {KN}
  .amdhsa_next_free_vgpr 512
  .amdhsa_next_free_sgpr 102
  .amdhsa_accum_offset 256
  .amdhsa_group_segment_fixed_size 0
  .amdhsa_kernarg_size 64
  .amdhsa_user_sgpr_count 2
  .amdhsa_user_sgpr_kernarg_segment_ptr 1
  .amdhsa_system_sgpr_workgroup_id_x 1
.end_amdhsa_kernel
'''

def assemble_size(body):
    import subprocess, tempfile, os
    with tempfile.TemporaryDirectory() as d:
        s = os.path.join(d, 'k.s'); o = os.path.join(d, 'k.o')
        open(s, 'w').write(HDR + body + FTR)
        r = subprocess.run(['clang', '-x', 'assembler', '-target', 'amdgcn-amd-amdhsa', '-mcpu=gfx950', '-c', s, '-o', o], capture_output=True, text=True)
        if r.returncode: print(r.stderr[:3000]); sys.exit(1)
        r = subprocess.run(['llvm-readelf', '-S', o], capture_output=True, text=True)
        for ln in r.stdout.split('\n'):
            if ' .text ' in ln:
                f = ln.split(); k = f.index('PROGBITS'); return int(f[k+3], 16)
    return 0

def main():
    import argparse
    ap = argparse.ArgumentParser()
    ap.add_argument('-o', default='standalone__mha_block_cached__near_ridge.s')
    for n in ('stamps', 'cyc', 'rot', 'nopf', 'xstamps', 'nont', 'nowarm', 'fakeq'): ap.add_argument('--' + n, action='store_true')
    ap.add_argument('--kvspread', type=int, default=0); ap.add_argument('--woloop', type=int, default=0); ap.add_argument('--rotp', default='1,2,0'); ap.add_argument('--stampset', default=''); ap.add_argument('--abl', default=''); ap.add_argument('--outf', default='sc1'); ap.add_argument('--mapping', default='m48'); ap.add_argument('--stop', default=None)
    ap.add_argument('--qflags', default=''); ap.add_argument('--stf', default='sc1'); ap.add_argument('--ldf', default='sc1'); ap.add_argument('--wof', default='')
    a = ap.parse_args()
    c = Cfg(); c.mapping = a.mapping; c.stamps = a.stamps; c.cyc = a.cyc; c.stop = a.stop; c.rot = a.rot
    c.prefetch_code = not a.nopf; c.xstamps = a.xstamps; c.qflags = a.qflags; c.st_flags = a.stf; c.ld_flags = a.ldf; c.wo_flags = a.wof; c.nt = not a.nont; c.warm_wo = not a.nowarm; c.fakeq = a.fakeq; c.abl = a.abl; c.stampset = a.stampset; c.ra, c.rb, c.rs = map(int, a.rotp.split(',')); c.kvspread = a.kvspread; c.woloop = a.woloop; c.out_flags = a.outf
    g = Gen(c)
    lines = g.build()
    body = '\n'.join(lines)
    if c.prefetch_code:
        est = assemble_size(body.replace('; PFCODE', ''))
        n = max(1, (est - 64) // 4096)
        magic = (65536 + n - 1) // n
        assert all(((v*magic) >> 16) == v//n for v in range(33))
        pf = [f'  s_mul_i32 s{sT3}, s{sT2}, {magic}', f'  s_lshr_b32 s{sT3}, s{sT3}, 16', f'  s_mul_i32 s{sT3}, s{sT3}, {n}',
              f'  s_sub_u32 s{sT2}, s{sT2}, s{sT3}', f'  s_lshl_b32 s{sT2}, s{sT2}, 12', f'  v_add_u32 v{vT}, s{sT2}, v{vT}',
              f'  global_load_dwordx4 {vr(vT+18,4)}, v{vT}, s[100:101]']
        body = body.replace('; PFCODE', '\n'.join(pf))
    body = re.sub(r' *;@\w+', '', body)
    open(a.o, 'w').write(HDR + body + '\n' + FTR)
    ls = body.split('\n')
    check_trace([ls[i] for i in make_trace(ls, reps=2)], 'kernel')
    print('wrote', a.o, 'code bytes ~', assemble_size(body), 'stamps', g.nstamp)

main()
```

```python
import sys, math, struct, re
sys.path.insert(0, 'gen')
from asmlib import *

KN = 'standalone__mha_block_cached__near_ridge_kernel'

class Cfg:
    mapping = 'm48'; stamps = False; cyc = False; stop = None; rot = False; nt = True; prefetch_code = True
    qflags = ''; st_flags = 'sc1'; ld_flags = 'sc1'; wo_flags = ''; xstamps = False; warm_wo = True; fakeq = False; lsum = 'ones'; qi = False; ra = 1; rb = 2; rs = 0; stampset = ''; abl = ''; out_flags = 'sc1'; kvspread = 0; woloop = 0; tailwo = 1

ACC = 0; LAC = 128; SB = 144; PB = 160; NM = 168
vKr = 184; vVr = 188; vKVd = 196; vWOd = 198; vWOr = 207; vL16 = 208
vXd = 209; vWd = 217; vXr = 221; vWr = 223
vNON = 232
vT = 234
aQ = 0; aK = 64; aV = 96; aONE = 228
aXA, aWA = 132, 148
aXB, aWB = 180, 196
aOB = 128; aWO = 0
OACC = 0
sX, sWQ, sK, sV, sWO, sOW, sPT, sOUT = 20, 24, 28, 32, 36, 40, 44, 48
sB_, sH, sW, sHG, sHH, sMH, sNQ = 52, 53, 54, 55, 56, 57, 58
sXoff, sWoff, sBase, sDelta, sKch, sCnt = 59, 60, 61, 62, 63, 64
sXL, sWL = 65, 66
sKVo, sKVl, sVo = 67, 68, 69
sT0, sT1, sT2, sT3 = 70, 71, 72, 73
sScale = 74
sWOo, sOo = 76, 77
sStamp = 78
sWOs, sWOm = 4, 5
sPrevB = 62
sPB = 3
sOS = 20
sWS = 28
sRot = 6

OFF_P = 0x1100000
PGRP = 4*4*18*1024
FLG_O = 0x2800000
FLG_P = 0x2820000
DUMMY_LDS = 73728
LDS_FLAG = 81920
vPK = 212
sRedo = 7
sSend = 32
LIMIT = 0x4e800000
LDS_Q0 = 16384
G_BASE = [90112, 126976, 36864, 0]
SCALE = math.log2(math.e) / math.sqrt(128.0)
def f32bits(x): return struct.unpack('<I', struct.pack('<f', x))[0]
def acc(qb, tau): return ACC + (qb*8 + tau)*4

class Gen:
    def __init__(self, cfg):
        self.c = cfg; self.p = Prog(); self.nstamp = 0; self.fake_tags = []
    def e(self, s): self.p.e(s)
    def stamp(self, kind='main'):
        if not self.c.stamps: return
        if self.c.stampset == 'O' and kind == 'main' and self.nstamp > 0: return
        if self.c.stampset != 'O' and kind == 'O': return
        i = self.nstamp; self.nstamp += 1
        assert sStamp + 2*i + 1 < 102
        self.e(f'{"s_memtime" if self.c.cyc else "s_memrealtime"} {sr(sStamp+2*i,2)}')
    def stream(self, mfmas, gaps):
        for i, m in enumerate(mfmas):
            self.e(m)
            fl = gaps.get(i, [])
            nonv = [x for x in fl if not x.lstrip().startswith('v_')]
            val = [x for x in fl if x.lstrip().startswith('v_')]
            for x in nonv + val: self.e(x)
        extra = [k for k in gaps if k >= len(mfmas) or k < 0]
        assert not extra, extra
    def spread(self, g, lst, lo, step, last):
        gi = lo; prev_m0 = False
        for x in lst:
            if x.startswith('buffer_load'):
                if prev_m0: gi += 1
                assert gi <= last, (gi, last, x)
                g.setdefault(gi, []).append(x)
                gi += step; prev_m0 = False
            else:
                g.setdefault(min(gi, last), []).append(x)
                if ' m0,' in x: prev_m0 = True
    def vmwait(self, tag, extra=''):
        self.e(f's_waitcnt vmcnt(@{tag}@){extra}')

    def setup(self):
        c = self.c; e = self.e
        e('s_cmp_ge_u32 s2, 256\ns_cbranch_scc1 L_end\ns_load_dwordx16 s[4:19], s[0:1], 0')
        self.stamp()
        if c.prefetch_code:
            e('s_getpc_b64 s[100:101]')
            e(f'v_lshlrev_b32 v{vT}, 4, v0')
            e(f's_lshr_b32 s{sT2}, s2, 3')
            e('; PFCODE')
        if c.mapping == 'A':
            e(f's_and_b32 s{sB_}, s2, 7\ns_lshr_b32 s{sH}, s2, 3')
        else:
            e(f'''s_and_b32 s{sT0}, s2, 7
s_lshr_b32 s{sT1}, s2, 3
s_and_b32 s{sB_}, s{sT1}, 3
s_and_b32 s{sT2}, s{sT0}, 1
s_lshl_b32 s{sT2}, s{sT2}, 2
s_add_u32 s{sB_}, s{sB_}, s{sT2}
s_lshr_b32 s{sT1}, s{sT1}, 2
s_lshr_b32 s{sT0}, s{sT0}, 1
s_lshl_b32 s{sH}, s{sT0}, 3
s_add_u32 s{sH}, s{sH}, s{sT1}''')
        e(f'''s_lshr_b32 s{sHG}, s{sH}, 3
s_and_b32 s{sHH}, s{sH}, 7
s_and_b32 s{sMH}, s{sHH}, 1
s_lshr_b32 s{sNQ}, s{sHH}, 1''')
        if c.rot:
            if c.mapping == 'A':
                e(f's_mov_b32 s{sT0}, s{sH}')
            else:
                e(f's_and_b32 s{sT0}, s{sB_}, 3\ns_mul_i32 s{sT0}, s{sT0}, {c.rb}\ns_lshr_b32 s{sT1}, s{sHH}, {c.rs}\ns_mul_i32 s{sT1}, s{sT1}, {c.ra}\ns_add_u32 s{sT0}, s{sT0}, s{sT1}')
            e(f'''s_mul_i32 s{sT1}, s{sT0}, 57
s_lshr_b32 s{sT1}, s{sT1}, 9
s_mul_i32 s{sT1}, s{sT1}, 9
s_sub_u32 s{sKch}, s{sT0}, s{sT1}''')
        else:
            e(f's_mov_b32 s{sKch}, 0')
        L, Q, G, C_, R, T0, T1, T2 = vT+2, vT+3, vT+4, vT+5, vT+6, vT+7, vT+8, vT+9
        self.lanevars = (L, Q, G, C_, R, T0, T1, T2)
        e(f'''v_lshrrev_b32 v{T0}, 6, v0
v_and_b32 v{L}, 63, v0
v_readfirstlane_b32 s{sW}, v{T0}
v_and_b32 v{Q}, 15, v{L}
v_lshrrev_b32 v{G}, 4, v{L}
v_and_b32 v{C_}, 3, v{L}
v_bfe_u32 v{R}, v{L}, 2, 2
v_lshlrev_b32 v{vL16}, 4, v{L}''')
        e(f'v_lshrrev_b32 v{T0}, 3, v{L}')
        e(f's_lshl_b32 s{sT0}, s{sW}, 6')
        e(f'v_add_u32 v{T0}, s{sT0}, v{T0}')
        e(f'v_mul_u32_u24 v{T0}, 1152, v{T0}')
        e(f'v_and_b32 v{T1}, 7, v{L}')
        for par in range(2):
            e(f'v_add_u32 v{T2}, {4*par}, v{G}')
            e(f'v_xor_b32 v{T2}, v{T2}, v{T1}')
            e(f'v_lshl_add_u32 v{T2}, v{T2}, 4, v{T0}')
            for i in range(par, 8, 2):
                e(f'v_add_u32 v{vXd+i}, {8*i*1152 - 1024*(i&3)}, v{T2}')
        e(f's_lshl_b32 s{sT0}, s{sW}, 4')
        e(f'v_add_u32 v{T0}, s{sT0}, v{G}')
        e(f'v_lshlrev_b32 v{T0}, 13, v{T0}')
        for hi in range(2):
            e(f'v_lshlrev_b32 v{T2}, 1, v{G}')
            if hi: e(f'v_or_b32 v{T2}, 8, v{T2}')
            e(f'v_xor_b32 v{T2}, v{T2}, v{Q}')
            e(f'v_lshl_add_u32 v{T2}, v{T2}, 4, v{T0}')
            for i in (2*hi, 2*hi+1):
                e(f'v_add_u32 v{vWd+i}, {4*i*8192 - 1024*i}, v{T2}')
        e('s_waitcnt lgkmcnt(0)')
        if c.xstamps: self.stamp()
        e(f'''s_mul_i32 s{sT0}, s{sB_}, 294912
s_add_u32 s{sX}, s4, s{sT0}
s_addc_u32 s{sX+1}, s5, 0
s_mov_b32 s{sX+2}, 294912
s_mov_b32 s{sX+3}, 0x20000
s_lshl_b32 s{sT0}, s{sH}, 8
s_add_u32 s{sWQ}, s10, s{sT0}
s_addc_u32 s{sWQ+1}, s11, 0
s_sub_u32 s{sWQ+2}, 4718592, s{sT0}
s_mov_b32 s{sWQ+3}, 0x20000
s_lshl_b32 s{sXL}, s{sW}, 13
s_lshl_b32 s{sWL}, s{sW}, 12
s_add_u32 s{sWL}, s{sWL}, 32768
s_lshl_b32 s{sXoff}, s{sKch}, 7
s_lshl_b32 s{sWoff}, s{sKch}, 19''')
        if c.fakeq:
            e(f's_mov_b32 s{sX}, s4\ns_mov_b32 s{sX+1}, s5\ns_mov_b32 s{sWQ}, s10\ns_mov_b32 s{sWQ+1}, s11\ns_mov_b32 s{sXoff}, 0\ns_mov_b32 s{sWoff}, 0')
        e(f's_mov_b32 s{sBase}, {LDS_Q0}')
        for x in self.qdma('q0'): e(x)
        for x in self.advance_kch(): e(x)
        if c.xstamps: self.stamp()
        e(f'''s_cmp_lg_u32 s{sW}, 0
s_cbranch_scc1 L_nonce_done
s_memrealtime s[{sT0}:{sT1}]
v_mov_b32 v{vT+12}, 0
v_mov_b32 v{vT+16}, 0
v_mov_b32 v{vT+17}, 0
s_waitcnt lgkmcnt(0)
s_or_b32 s{sT0}, s{sT0}, 1
v_mov_b32 v{vT+14}, s{sT0}
v_mov_b32 v{vT+15}, s{sT1}
s_mov_b64 exec, 1
global_atomic_cmpswap_x2 {vr(vNON,2)}, v{vT+12}, {vr(vT+14,4)}, s[16:17] sc0 sc1 ;@x
s_mov_b64 exec, -1
s_mov_b32 s{sPB}, s{sT0}
s_mov_b32 s{sDelta}, s{sT1}''')
        self.p.label('L_nonce_done')
        self.setup_early()
        if c.xstamps: self.stamp()
        e(f's_mov_b32 s{sBase}, {LDS_Q0+49152}')
        for x in self.qdma('q1'): e(x)
        for x in self.advance_kch(): e(x)

    def advance_kch(self):
        if self.c.fakeq: return ['s_nop 0']
        return [f's_add_u32 s{sKch}, s{sKch}, 1', f's_cmp_eq_u32 s{sKch}, 9', f's_cselect_b32 s{sKch}, 0, s{sKch}',
                f's_lshl_b32 s{sXoff}, s{sKch}, 7', f's_lshl_b32 s{sWoff}, s{sKch}, 19']

    def qdma(self, tag, base=None, half=None):
        b = sBase if base is None else base
        fl = self.c.qflags
        o = []
        xs = range(8) if half is None else (range(6) if half == 0 else range(6, 8))
        cur = None
        for i in xs:
            if cur != i >> 2:
                cur = i >> 2
                if cur == 0: o.append(f's_add_u32 m0, s{b}, s{sXL}')
                elif i == 4: o.append('s_add_u32 m0, m0, 4096')
                else:
                    o.append(f's_add_u32 s{sT0}, s{b}, s{sXL}'); o.append(f's_add_u32 m0, s{sT0}, 4096')
                o.append('s_nop 0')
            o.append(f'buffer_load_dwordx4 v{vXd+i}, {sr(sX,4)}, s{sXoff} offen offset:{1024*(i&3)} {fl} lds ;@{tag}')
        if half != 0:
            o.append(f's_add_u32 m0, s{b}, s{sWL}')
            o.append('s_nop 0')
            for i in range(4): o.append(f'buffer_load_dwordx4 v{vWd+i}, {sr(sWQ,4)}, s{sWoff} offen offset:{1024*i} {fl} lds ;@{tag}')
        return o

    def setup_early(self):
        e = self.e
        L, Q, G, C_, R, T0, T1, T2 = self.lanevars
        e(f'''v_lshrrev_b32 v{T0}, 1, v{Q}
v_lshlrev_b32 v{T1}, 7, v{Q}
s_add_u32 s{sT0}, s{sXL}, {LDS_Q0}
v_add_u32 v{T1}, s{sT0}, v{T1}''')
        for ks in range(2):
            e(f'v_add_u32 v{T2}, {4*ks}, v{G}\nv_xor_b32 v{T2}, v{T2}, v{T0}\nv_lshl_add_u32 v{vXr+ks}, v{T2}, 4, v{T1}')
        e(f'''v_lshl_add_u32 v{T0}, v{G}, 3, v{R}
v_lshlrev_b32 v{T1}, 8, v{T0}
v_and_b32 v{T2}, 1, v{C_}
v_lshl_add_u32 v{T1}, v{T2}, 3, v{T1}
v_add_u32 v{T1}, {LDS_Q0+32768}, v{T1}
v_and_b32 v{T0}, 1, v{G}
v_lshl_add_u32 v{T0}, v{T0}, 2, v{R}
v_lshlrev_b32 v{T0}, 1, v{T0}
v_lshrrev_b32 v{T2}, 1, v{C_}
v_xor_b32 v{T0}, v{T0}, v{T2}''')
        for tau in range(8):
            e(f'v_xor_b32 v{T2}, {2*tau}, v{T0}\nv_lshl_add_u32 v{vWr+tau}, v{T2}, 4, v{T1}')

    def deferred_kv(self):
        L, Q, G, C_, R, T0, T1, T2 = self.lanevars
        o = []
        def e(t): o.extend(x for x in t.split('\n') if x.strip())
        e(f'v_and_b32 v{T0}, 7, v{Q}\nv_lshlrev_b32 v{T0}, 1, v{T0}\nv_lshlrev_b32 v{T1}, 8, v{Q}')
        for t in range(4):
            e(f'v_add_u32 v{T2}, {4*t}, v{G}\nv_xor_b32 v{T2}, v{T2}, v{T0}\nv_lshl_add_u32 v{vKr+t}, v{T2}, 4, v{T1}')
        e(f'''v_lshl_add_u32 v{T0}, v{G}, 2, v{R}
v_lshlrev_b32 v{T1}, 8, v{T0}
v_and_b32 v{T0}, 7, v{T0}
v_lshlrev_b32 v{T0}, 1, v{T0}
v_and_b32 v{T2}, 1, v{C_}
v_lshl_add_u32 v{T1}, v{T2}, 3, v{T1}
v_lshrrev_b32 v{T2}, 1, v{C_}
v_xor_b32 v{T0}, v{T0}, v{T2}''')
        for tau in range(8):
            e(f'v_xor_b32 v{T2}, {2*tau}, v{T0}\nv_lshl_add_u32 v{vVr+tau}, v{T2}, 4, v{T1}')
        e(f'v_lshlrev_b32 v{T1}, 8, v{G}')
        for p_ in range(2):
            e(f'v_add_u32 v{T2}, {4*p_}, v{G}\nv_lshlrev_b32 v{T2}, 1, v{T2}\nv_xor_b32 v{T2}, v{T2}, v{Q}\nv_lshl_add_u32 v{vKVd+p_}, v{T2}, 4, v{T1}')
        e(f'v_mov_b32 v{T0}, 0x3f803f80')
        for i in range(4): e(f'v_accvgpr_write_b32 a{aONE+i}, v{T0}')
        e(f'''s_lshl_b32 s0, s{sB_}, 5
s_add_u32 s0, s0, s{sH}
s_lshl_b32 s0, s0, 18
s_add_u32 s{sK}, s6, s0
s_addc_u32 s{sK+1}, s7, 0
s_mov_b32 s{sK+2}, 262144
s_mov_b32 s{sK+3}, 0x20000
s_add_u32 s{sV}, s8, s0
s_addc_u32 s{sV+1}, s9, 0
s_mov_b32 s{sV+2}, 262144
s_mov_b32 s{sV+3}, 0x20000
s_lshl_b32 s{sKVl}, s{sW}, 11
s_mov_b32 s{sKVo}, s{sKVl}
s_mov_b32 s{sScale}, {f32bits(SCALE):#x}
s_mov_b32 s{sScale+1}, {f32bits(SCALE):#x}''')
        return o

    def deferred_wo(self):
        L, Q, G, C_, R, T0, T1, T2 = self.lanevars
        o = []
        def e(t): o.extend(x for x in t.split('\n') if x.strip())
        for i in range(9):
            e(f'''v_add_u32 v{T0}, {64*i}, v{L}
v_mul_u32_u24 v{T1}, 3641, v{T0}
v_lshrrev_b32 v{T1}, 16, v{T1}
v_mul_u32_u24 v{T2}, 18, v{T1}
v_sub_u32 v{T2}, v{T0}, v{T2}
v_mul_u32_u24 v{T1}, 1152, v{T1}
v_lshl_add_u32 v{T1}, v{T2}, 4, v{T1}
v_subrev_u32 v{vWOd+i}, {1024*(i%3)}, v{T1}''')
        e(f'v_lshl_add_u32 v{T0}, v{G}, 2, v{R}\nv_mul_u32_u24 v{T0}, 288, v{T0}\nv_lshl_add_u32 v{vWOr}, v{C_}, 3, v{T0}')
        e(f'''s_mov_b32 s{sWO}, s12
s_mov_b32 s{sWO+1}, s13
s_mov_b32 s{sWO+2}, 4718592
s_mov_b32 s{sWO+3}, 0x20000
s_lshl_b32 s0, s{sB_}, 21
s_add_u32 s{sOW}, s18, s0
s_addc_u32 s{sOW+1}, s19, 0
s_mov_b32 s{sOW+2}, 0x200000
s_mov_b32 s{sOW+3}, 0x20000
s_lshl_b32 s0, s{sB_}, 3
s_lshl_b32 s1, s{sMH}, 2
s_add_u32 s0, s0, s1
s_add_u32 s0, s0, s{sNQ}
s_mul_i32 s0, s0, {PGRP}
s_add_u32 s0, s0, {OFF_P}
s_add_u32 s{sPT}, s18, s0
s_addc_u32 s{sPT+1}, s19, 0
s_mov_b32 s{sPT+2}, {PGRP}
s_mov_b32 s{sPT+3}, 0x20000
s_mul_i32 s0, s{sB_}, 294912
s_add_u32 s{sOUT}, s14, s0
s_addc_u32 s{sOUT+1}, s15, 0
s_mov_b32 s{sOUT+2}, 294912
s_mov_b32 s{sOUT+3}, 0x20000
s_lshl_b32 s0, s{sW}, 5
s_lshl_b32 s1, s{sHG}, 10
s_add_u32 s0, s0, s1
s_mul_i32 s0, s0, 1152
s_mul_i32 s1, s{sNQ}, 288
s_add_u32 s{sWOo}, s0, s1''')
        if self.c.mapping == 'A': e(f's_mov_b32 s{sRot}, 0')
        else: e(f's_and_b32 s{sRot}, s{sB_}, 3\ns_lshl_b32 s{sRot}, s{sRot}, 1')
        e(f's_mov_b32 s{sRedo}, 0')
        return o

    def defer(self, g, lst, lo, hi):
        gi = lo; cnt = 0; lastv = False
        i = 0
        while i < len(lst):
            x = lst[i]; isv = x.startswith('v_')
            grp = [x]
            if x.startswith('s_add_u32') and i + 1 < len(lst) and lst[i+1].startswith('s_addc'): grp.append(lst[i+1])
            if cnt >= 2 or (not isv and lastv): gi += 1; cnt = 0; lastv = False
            assert gi <= hi, (gi, hi, len(lst) - i)
            g.setdefault(gi, []).extend(grp)
            cnt += len(grp); lastv = lastv or isv
            i += len(grp)
        return gi

    def q_reads(self, ks, aX, aW):
        xs = [f'ds_read_b128 {ar(aX+4*qb,4)}, v{vXr+ks} offset:{qb*2048}' for qb in range(4)]
        ws_ = [f'ds_read_b64_tr_b16 {ar(aW+4*tau+2*jj,2)}, v{vWr+tau} offset:{ks*8192+jj*1024}' for tau in range(8) for jj in range(2)]
        return [xs[0], ws_[0], ws_[1]] + xs[1:] + ws_[2:]
    def q_mfmas(self, aX, aW, first=False):
        m = []
        for tau in range(8):
            for qb in range(4):
                d = vr(acc(qb, tau), 4)
                m.append(f'v_mfma_f32_16x16x32_bf16 {d}, {ar(aW+4*tau,4)}, {ar(aX+4*qb,4)}, {"0" if first else d}')
        return m
    def kv_dma(self, stage, doK=True, doV=True):
        slot = (stage % 4) * 16384
        nt = ' nt' if self.c.nt else ''
        tag = f'st{stage % 4}'
        o = []
        if doK:
            o.append(f's_add_u32 m0, s{sKVl}, {slot}'); o.append('s_nop 0')
            for p_ in range(2): o.append(f'buffer_load_dwordx4 v{vKVd+p_}, {sr(sK,4)}, s{sKVo} offen offset:{1024*p_}{nt} lds ;@{tag}')
        if doV:
            o.append(f's_add_u32 m0, s{sKVl}, {slot+8192}'); o.append('s_nop 0')
            for p_ in range(2): o.append(f'buffer_load_dwordx4 v{vKVd+p_}, {sr(sV,4)}, s{sVo} offen offset:{1024*p_}{nt} lds ;@{tag}')
        o.append(f's_mov_b32 s{sVo}, s{sKVo}')
        o.append(f's_add_u32 s{sKVo}, s{sKVo}, 8192')
        return o
    def kv_one(self, stage, which):
        slot = (stage % 4) * 16384
        nt = ' nt' if self.c.nt else ''
        isV = which >= 2; p_ = which & 1
        srd = sV if isV else sK; so = sVo if isV else sKVo
        return [f's_add_u32 m0, s{sKVl}, {slot + (8192 if isV else 0)}',
                f'buffer_load_dwordx4 v{vKVd+p_}, {sr(srd,4)}, s{so} offen offset:{1024*p_}{nt} lds ;@st{stage % 4}']
    def wo_one(self, i, tag):
        return [f's_add_u32 m0, s{sWOm}, {3072*(i//3)}',
                f'buffer_load_dwordx4 v{vWOd+i}, {sr(sWO,4)}, s{sWOs} offen offset:{1024*(i%3)} {self.c.wo_flags} lds ;@{tag}']
    def k_reads(self, tile):
        slot = (tile % 4) * 16384
        return {(u, t): f'ds_read_b128 {ar(aK+(u*4+t)*4,4)}, v{vKr+t} offset:{slot+4096*u}' for u in range(2) for t in range(4)}
    def v_reads(self, tile):
        slot = ((tile+1) % 4) * 16384 + 8192
        return {(tau, jj): f'ds_read_b64_tr_b16 {ar(aV+tau*4+2*jj,2)}, v{vVr+tau} offset:{slot+4096*jj}' for tau in range(8) for jj in range(2)}

    def q_chunk(self, c, first=False, p1=None, p2=None, wait_tag=None, last=False, d1=None, d2=None):
        e = self.e
        e('s_waitcnt lgkmcnt(0)')
        g = {}
        for i, r in enumerate(self.q_reads(1, aXB, aWB)): g.setdefault(i + (1 if i > 0 else 0) * 0, []).append(r)
        if p1:
            nl = sum(1 for x in p1 if x.startswith('buffer_load'))
            if nl <= 6: self.spread(g, [x for x in p1 if x != 's_nop 0'], 19, 2, 31)
            else: self.spread(g, [x for x in p1 if x != 's_nop 0'], 1, len_step(p1, 30), 31)
        if d1: self.defer(g, d1, 0, 31)
        g = self.qabl(g)
        self.stream(self.q_mfmas(aXA, aWA, first=first), g)
        self.vmwait(wait_tag, ' lgkmcnt(0)')
        if 'B' not in self.c.abl: e('s_barrier')
        g = {}
        if not last:
            for x in [f's_mov_b32 s{sDelta}, 49152', f's_cmp_eq_u32 s{sBase}, {LDS_Q0+2*49152}', f's_cselect_b32 s{sDelta}, {(-98304) & 0xffffffff:#x}, s{sDelta}']: e(x)
            upd = [f'v_add_u32 v{r}, s{sDelta}, v{r}' for r in list(range(vXr, vXr+2)) + list(range(vWr, vWr+8))]
            for i, u in enumerate(upd): g.setdefault(i//2, []).append(u)
            for i, r in enumerate(self.q_reads(0, aXA, aWA)): g.setdefault(5 + i, []).append(r)
            g.setdefault(0, []).insert(0, f's_mov_b32 s{sPB}, s{sBase}')
            g.setdefault(0, []).insert(1, f's_add_u32 s{sBase}, s{sBase}, s{sDelta}')
        else:
            for i, r in enumerate(self.k_reads(0).values()): g.setdefault(2 + i, []).append(r)
        if p2: self.spread(g, [x for x in p2 if x != 's_nop 0'], 1, len_step(p2, 30), 31)
        if d2: self.defer(g, d2, 6, 31)
        g = self.qabl(g)
        self.stream(self.q_mfmas(aXB, aWB), g)

    def qabl(self, g):
        ab = self.c.abl
        out = {}
        for k, v in g.items():
            out[k] = [x for x in v if not (('D' in ab and x.startswith('buffer_load')) or ('R' in ab and x.startswith('ds_read')))]
        return out
    def q_phase(self):
        e = self.e
        self.vmwait('q0')
        e(f'''s_cmp_lg_u32 s{sW}, 0
s_cbranch_scc1 L_nonce2
v_or_b32 v{vT}, v{vNON}, v{vNON+1}
v_cmp_eq_u32 vcc, 0, v{vT}
v_mov_b32 v{vT+10}, s{sPB}
v_mov_b32 v{vT+11}, s{sDelta}
v_cndmask_b32 v{vNON}, v{vNON}, v{vT+10}, vcc
v_cndmask_b32 v{vNON+1}, v{vNON+1}, v{vT+11}, vcc
v_mov_b32 v{vT}, 0
s_mov_b64 exec, 1
ds_write_b64 v{vT}, {vr(vNON,2)}
s_mov_b64 exec, -1
s_waitcnt lgkmcnt(0)''')
        self.p.label('L_nonce2')
        e('s_barrier')
        e(f'v_mov_b32 v{vT}, 0')
        e(f'ds_read_b64 {vr(vNON,2)}, v{vT}')
        e(f's_mov_b32 s{sRedo}, 0') if False else None
        self.stamp()
        e(f's_mov_b32 s{sBase}, {LDS_Q0}')
        for r in self.q_reads(0, aXA, aWA): e(r)
        e(f's_mov_b32 s{sPB}, {LDS_Q0+2*49152}')
        dk = self.deferred_kv(); dw = self.deferred_wo()
        self.q_chunk(0, first=True, p1=self.qdma('qa', base=sPB) + self.advance_kch(), p2=self.qdma('qb', base=sPB, half=0), wait_tag='q1', d1=dk[:52], d2=dk[52:])
        e(f's_mov_b32 s{sCnt}, 5')
        e('.p2align 4')
        self.p.label('L_q')
        self.q_chunk(1, p1=self.qdma('qb', base=sPB, half=1) + self.advance_kch(), p2=self.qdma('qc', base=sPB, half=0), wait_tag='@Q')
        e(f's_sub_u32 s{sCnt}, s{sCnt}, 1\ns_cmp_lg_u32 s{sCnt}, 0\ns_cbranch_scc1 L_q')
        self.q_chunk(6, p1=self.qdma('q8', base=sPB, half=1), p2=self.kv_dma(0, doV=False) + self.kv_dma(1), wait_tag='@Q6', d1=dw[:56], d2=dw[56:75])
        self.q_chunk(7, p1=self.kv_dma(2), p2=self.kv_dma(3), wait_tag='q8', d1=dw[75:])
        self.q_chunk(8, wait_tag='st0', last=True)
        self.stamp()
        e('s_nop 7')
        slots = []
        it = iter(slots)
        for t in range(4):
            for qb in range(4):
                grp = next(it, [])
                for x in grp[:-1]: e(x)
                pend_load = grp[-1:]
                X = acc(qb, 2*t); Y = acc(qb, 2*t+1)
                for r in (X, X+2, Y, Y+2):
                    e(f'v_pk_mul_f32 {vr(r,2)}, {vr(r,2)}, {sr(sScale,2)}')
                for x in pend_load: e(x)
                T = vT + 4*(qb % 2)
                e(f'v_cvt_pk_bf16_f32 v{T}, v{X}, v{X+1}')
                e(f'v_cvt_pk_bf16_f32 v{T+1}, v{X+2}, v{X+3}')
                e(f'v_cvt_pk_bf16_f32 v{T+2}, v{Y}, v{Y+1}')
                e(f'v_cvt_pk_bf16_f32 v{T+3}, v{Y+2}, v{Y+3}')
                e('s_nop 0')
                e(f'v_permlane32_swap_b32 v{T}, v{T+2}')
                e(f'v_permlane32_swap_b32 v{T+1}, v{T+3}')
                e('s_nop 0')
                e(f'v_permlane16_swap_b32 v{T}, v{T+2}')
                e(f'v_permlane16_swap_b32 v{T+1}, v{T+3}')
                for i in range(4): e(f'v_accvgpr_write_b32 a{aQ+(qb*4+t)*4+i}, v{T+i}')
        for grp in it:
            for x in grp[:-1]: e(x)
            e('s_nop 0'); e(grp[-1])

    def wo_warm(self):
        e = []
        if self.c.mapping == 'A':
            e += [f's_add_u32 s{sT2}, s{sHH}, 4']
        else:
            e += [f's_and_b32 s{sT2}, s{sB_}, 3', f's_lshl_b32 s{sT2}, s{sT2}, 1', f's_add_u32 s{sT2}, s{sT2}, s{sMH}']
        e += [f's_and_b32 s{sT2}, s{sT2}, 7', f's_mul_i32 s{sT2}, s{sT2}, {128*1152}', f's_add_u32 s{sWOs}, s{sT2}, s{sWOo}', f's_mov_b32 s{sWOm}, {DUMMY_LDS}']
        for k in range(3):
            l = self.wo_loads3(k, 'warm')
            e += [l[0], 's_nop 0'] + l[1:]
        return e

    def qk_order(self):
        return [(u, t) for t in range(4) for u in range(2)] if self.c.qi else [(u, t) for u in range(2) for t in range(4)]
    def qk_mfmas(self, qb, sbuf, cinit):
        m = []
        for u, t in self.qk_order():
            d = vr(sbuf + 4*u, 4)
            m.append(f'v_mfma_f32_16x16x32_bf16 {d}, {ar(aK+(u*4+t)*4,4)}, {ar(aQ+(qb*4+t)*4,4)}, {cinit if t == 0 else d}')
        return m
    def pv_mfmas(self, qb, pbuf, first):
        m = []
        for tau in range(8):
            d = vr(acc(qb, tau), 4)
            m.append(f'v_mfma_f32_16x16x32_bf16 {d}, {ar(aV+tau*4,4)}, {vr(pbuf,4)}, {"0" if first else d}')
        if self.c.lsum == 'ones':
            d = vr(LAC + 4*qb, 4)
            m.append(f'v_mfma_f32_16x16x32_bf16 {d}, {ar(aONE,4)}, {vr(pbuf,4)}, {"0" if first else d}')
        return m
    def wo_loads3(self, k, tag):
        o = [f's_add_u32 m0, s{sWOm}, {3072*k}']
        for i in range(3*k, 3*k+3):
            o.append(f'buffer_load_dwordx4 v{vWOd+i}, {sr(sWO,4)}, s{sWOs} offen offset:{1024*(i%3)} {self.c.wo_flags} lds ;@{tag}')
        return o
    def head_of(self, gam):
        if gam == 0: return [f's_mov_b32 s{sT2}, s{sHH}']
        return [f's_add_u32 s{sT2}, s{sRot}, {gam-1}', f's_sub_u32 s{sT3}, s{sT2}, 7', f's_cmp_ge_u32 s{sT2}, 7', f's_cselect_b32 s{sT2}, s{sT3}, s{sT2}',
                f's_add_u32 s{sT2}, s{sT2}, s{sHH}', f's_add_u32 s{sT2}, s{sT2}, 1', f's_and_b32 s{sT2}, s{sT2}, 7']
    def wo_setup(self, gam):
        return self.head_of(gam) + [f's_mul_i32 s{sT2}, s{sT2}, {128*1152}',
                f's_add_u32 s{sWOs}, s{sT2}, s{sWOo}', f's_mul_i32 s{sT3}, s{sW}, 9216', f's_add_u32 s{sWOm}, s{sT3}, {G_BASE[gam % 4]}']
    def wo_dma(self, gam):
        o = self.wo_setup(gam)
        for k in range(3):
            l = self.wo_loads3(k, f'wo{gam}')
            o += [l[0], 's_nop 0'] + l[1:]
        return o

    def unit(self, n, sm=True, pv=True, first_pv=False, skipv=False, wo1=None, pre=None, tail=False):
        e = self.e
        qb = n % 4; tile = n // 4
        if qb == 0:
            if tail and tile + 1 > 32: e('s_waitcnt lgkmcnt(0)')
            else: self.vmwait(f'st{(tile+1) % 4}', ' lgkmcnt(0)')
            e('s_barrier')
        mf = self.qk_mfmas(qb, SB + 8*(n % 2), vr(NM + 4*qb, 4)) if not (tail and n >= 128) else []
        if pv: mf += self.pv_mfmas((n-2) % 4, PB + 4*((n-2) % 2), first_pv)
        N = len(mf)
        g = {}
        def put(i, x): g.setdefault(min(i, N-1), []).append(x)
        if pre:
            for x in pre: put(0, x)
        NF = 17 if self.c.lsum == 'ones' else 16
        full = N >= NF
        if sm and not (tail and n - 1 > 127):
            s = SB + 8*((n-1) % 2); pb = PB + 4*((n-1) % 2)
            if full: eg = [0, 2, 4, 6, 8, 10, 12, 14]; cg = [3, 7, 11, 15]
            elif N == 9: eg = [0, 1, 2, 3, 4, 5, 6, 7]; cg = [2, 4, 6, 8]
            else: eg = [0, 1, 2, 3, 4, 5, 6, 6]; cg = [3, 5, 7, 7]
            for i in range(8): put(eg[i], f'v_exp_f32 v{s+i}, v{s+i}')
            for i in range(4): put(cg[i], f'v_cvt_pk_bf16_f32 v{pb+i}, v{s+2*i}, v{s+2*i+1}')
            lq = LAC + 4*((n-1) % 4)
            if self.c.lsum == 'add':
                ag = [1, 3, 5, 7, 9, 11, 13, 15] if full else [min(x+1, N-1) for x in eg]
                for i in range(8): put(ag[i], f'v_add_f32 v{lq + (i & 1)}, v{lq + (i & 1)}, v{s+i}')
            elif self.c.lsum == 'pk':
                ag = [5, 9, 13, 15] if full else [min(x+1, N-1) for x in cg]
                ag = [3, 7, 11, 15] if full else ag
                for i in range(4): put(ag[i], f'v_pk_add_f32 {vr(lq,2)}, {vr(lq,2)}, {vr(s+2*i,2)}')
        if not self.c.kvspread:
            if qb == 0 and not (tail and tile + 4 > 32):
                d = [x for x in self.kv_dma(tile + 4) if x != 's_nop 0']
                pos = [0, 1, 5, 8, 9, 13, N-1, N-1] if full else [0, 1, 2, 3, 4, 5, N-1, N-1]
                for x, gi in zip(d, pos): put(gi, x)
        elif not (tail and tile + 4 > 32):
            ld = self.kv_one(tile + 4, qb)
            gi = {0: 5, 1: 5, 2: 9, 3: 13}[qb] if N >= 17 else {0: 5, 1: 6, 2: 5, 3: 5}[qb]
            put(gi-1, ld[0]); put(gi, ld[1])
            if qb == 3:
                put(N-1, f's_mov_b32 s{sVo}, s{sKVo}'); put(N-1, f's_add_u32 s{sKVo}, s{sKVo}, 8192')
        if wo1 is not None:
            ld = self.wo_one(wo1, 'wop')
            gi = {0: 13, 1: 1, 2: 13, 3: 16}[qb] if self.c.kvspread else {0: 16, 1: 1, 2: 13, 3: 16}[qb]
            put(gi-1, ld[0]); put(gi, ld[1])
        if qb == 3 and not (tail and tile + 1 > 31):
            kr = self.k_reads(tile + 1)
            if self.c.qi: kp = {(0,0):1, (1,0):1, (0,1):3, (1,1):3, (0,2):5, (1,2):5, (0,3):7, (1,3):9}
            else: kp = {(0,0):1, (0,1):1, (0,2):3, (0,3):3, (1,0):5, (1,1):5, (1,2):7, (1,3):9}
            for k, gi in kp.items(): put(gi, kr[k])
        if qb in (1, 2) and pv and not skipv and not (tail and tile > 31):
            vrd = self.v_reads(tile)
            pl = {(0,0):9, (0,1):9, (1,0):11, (1,1):11, (2,0):13, (2,1):13, (3,0):15, (3,1):16, (4,0):16} if qb == 1 else \
                 {(4,1):1, (5,0):1, (5,1):3, (6,0):3, (6,1):5, (7,0):5, (7,1):7}
            for k, gi in pl.items(): put(gi, vrd[k])
        if tail and self.c.tailwo:
            plan = {118: (0, [0,1,2]), 119: (0, [3,4,5]), 120: (0, [6,7,8]), 121: (1, [0,1]), 122: (1, [2,3,4]), 123: (1, [5,6]),
                    124: (1, [7,8]), 125: (2, [0,1]), 126: (2, [2,3,4]), 127: (2, [5,6,7,8]), 128: (3, [0,1,2,3,4]), 129: (3, [5,6,7,8])}
            free = {0: [1, 9, 13, 16], 1: [1, 5], 2: [9, 13, 16], 3: [11, 13, 16]}
            gam, idxs = plan[n]
            if idxs[0] == 0:
                for x in self.wo_setup(gam): put(0, x)
            fr = free[qb] if full else list(range(1, N))
            if full and tile + 4 > 32 and qb == 0: fr = [1, 5, 9, 13, 16]
            fr = [min(x, N-1) for x in fr]
            if n == 127: fr = [1, 5, 9, 13]
            if n == 123: fr = [11, 13, 16]
            for i, gi in zip(idxs, fr):
                ld = self.wo_one(i, f'wo{gam}')
                put(gi-1, ld[0]); put(gi, ld[1])
            assert len(idxs) <= len(fr), n
        abl = self.c.abl
        if abl and n >= 6:
            for k in list(g):
                keep = []
                for x in g[k]:
                    if 'd' in abl and x.startswith('buffer_load'): continue
                    if 'l' in abl and x.startswith('ds_read'): continue
                    if 'e' in abl and x.startswith('v_exp'): continue
                    if 'c' in abl and x.startswith('v_cvt'): continue
                    keep.append(x)
                g[k] = keep
            if 'o' in abl and pv: mf = mf[:-1]; g = {k: v for k, v in g.items() if k < len(mf)} if False else g;
            if 'o' in abl and pv:
                last = g.pop(16, [])
                g.setdefault(15, []).extend(last)
        self.stream(mf, g)

    def attn_prologue(self):
        e = self.e
        e('s_waitcnt lgkmcnt(0)')
        for qb in range(4):
            d = vr(SB + 4*qb, 4)
            for t in range(4):
                e(f'v_mfma_f32_16x16x32_bf16 {d}, {ar(aK+t*4,4)}, {ar(aQ+(qb*4+t)*4,4)}, {"0" if t == 0 else d}')
        e('s_nop 7')
        for qb in range(4):
            s = SB + 4*qb; T = vT + 2*qb
            e(f'v_max3_f32 v{T}, v{s}, v{s+1}, v{s+2}')
            e(f'v_max_f32 v{T}, v{T}, v{s+3}')
            e(f'v_mov_b32 v{T+1}, v{T}')
        e('s_nop 0')
        for qb in range(4): e(f'v_permlane32_swap_b32 v{vT+2*qb}, v{vT+2*qb+1}')
        for qb in range(4): e(f'v_max_f32 v{vT+2*qb}, v{vT+2*qb}, v{vT+2*qb+1}')
        for qb in range(4): e(f'v_mov_b32 v{vT+2*qb+1}, v{vT+2*qb}')
        e('s_nop 0')
        for qb in range(4): e(f'v_permlane16_swap_b32 v{vT+2*qb}, v{vT+2*qb+1}')
        for qb in range(4): e(f'v_max_f32 v{vT+2*qb}, v{vT+2*qb}, v{vT+2*qb+1}')
        for qb in range(4):
            for i in range(4): e(f'v_sub_f32 v{NM+4*qb+i}, 0, v{vT+2*qb}')
        e('s_nop 1')

    def attention(self):
        e = self.e
        self.attn_prologue()
        self.stamp()
        self.p.label('L_att_units')
        if self.c.lsum != 'ones':
            for qb in range(4): e(f'v_mov_b32 v{LAC+4*qb}, 0\nv_mov_b32 v{LAC+4*qb+1}, 0')
        self.unit(0, sm=False, pv=False)
        for r in self.v_reads(0).values(): e(r)
        self.unit(1, pv=False)
        e('s_waitcnt lgkmcnt(0)')
        if self.c.qi: e('s_nop 1')
        self.unit(2, first_pv=True, skipv=True)
        self.unit(3, first_pv=True)
        self.unit(4, first_pv=True)
        self.unit(5, first_pv=True)
        e(f's_mov_b32 s{sCnt}, 7')
        e('.p2align 4')
        self.p.label('L_att')
        if self.c.mapping == 'A': warm = [f's_add_u32 s{sT1}, s{sHH}, 4']
        else: warm = [f's_and_b32 s{sT1}, s{sB_}, 3', f's_lshl_b32 s{sT1}, s{sT1}, 1', f's_add_u32 s{sT1}, s{sT1}, s{sMH}']
        pre = [f's_sub_u32 s{sT0}, 7, s{sCnt}', f's_add_u32 s{sT2}, s{sHH}, s{sT0}'] + warm + [
               f's_cmp_eq_u32 s{sT0}, 2', f's_cselect_b32 s{sT2}, s{sT1}, s{sT2}',
               f's_and_b32 s{sT2}, s{sT2}, 7', f's_mul_i32 s{sT2}, s{sT2}, {128*1152}',
               f's_add_u32 s{sWOs}, s{sT2}, s{sWOo}', f's_mul_i32 s{sT3}, s{sT0}, 36864', f's_mul_i32 s{sT1}, s{sW}, 9216',
               f's_add_u32 s{sT3}, s{sT3}, s{sT1}', f's_add_u32 s{sWOm}, s{sT3}, {G_BASE[0]}',
               f's_cmp_lt_u32 s{sT0}, 2', f's_cselect_b32 s{sWOm}, s{sWOm}, {DUMMY_LDS}',
               f's_cmp_lt_u32 s{sT0}, {3 if self.c.warm_wo else 2}', f's_cselect_b32 s{sWOs}, s{sWOs}, 4718592']
        won = {7: 0, 8: 1, 10: 2, 11: 3, 12: 4, 14: 5, 16: 6, 18: 7, 20: 8}
        for n in range(6, 22):
            self.unit(n, pre=pre if (n == 6 and self.c.woloop) else None, wo1=won.get(n) if self.c.woloop else None)
        e(f's_sub_u32 s{sCnt}, s{sCnt}, 1\ns_cmp_lg_u32 s{sCnt}, 0\ns_cbranch_scc1 L_att')
        for n in range(118, 130):
            self.unit(n, tail=True)
            if n == 128: e('s_nop 1')
            if n == 127:
                e(f's_lshl_b32 s{sT0}, s{sH}, 16\ns_lshl_b32 s{sT1}, s{sW}, 14\ns_add_u32 s{sOo}, s{sT0}, s{sT1}')
                self.norm_store(0)
            if n == 128: self.norm_store(1)

    def poll(self, name, nl, vaddr):
        e = self.e
        A, B = vT+10, vT+12
        def chk(r):
            return f'''v_cmp_eq_u32 vcc, v{r}, v{vNON}
v_cmp_eq_u32 s[{sT0}:{sT1}], v{r+1}, v{vNON+1}
s_and_b64 vcc, vcc, s[{sT0}:{sT1}]
s_cmp_eq_u32 vcc_lo, {(1 << nl) - 1}
s_cbranch_scc1 L_{name}_ok'''
        e(f's_mov_b32 s{sT2}, 0')
        e(f'global_load_dwordx2 {vr(A,2)}, v{vaddr}, s[18:19] sc1 ;@x')
        self.p.label(f'L_{name}_poll')
        e(f'global_load_dwordx2 {vr(B,2)}, v{vaddr}, s[18:19] sc1 ;@x')
        e('s_waitcnt vmcnt(1)')
        e(chk(A))
        e(f'global_load_dwordx2 {vr(A,2)}, v{vaddr}, s[18:19] sc1 ;@x')
        e('s_waitcnt vmcnt(1)')
        e(chk(B))
        e(f's_add_u32 s{sT2}, s{sT2}, 1\ns_cmp_lt_u32 s{sT2}, 0x40000\ns_cbranch_scc1 L_{name}_poll')
        self.p.label(f'L_{name}_ok')

    def norm_store(self, qb):
        e = self.e
        R = vT + 4
        if self.c.lsum != 'ones':
            l = LAC + 4*qb
            e(f'v_add_f32 v{l}, v{l}, v{l+1}\ns_nop 0\nv_mov_b32 v{l+1}, v{l}\ns_nop 1\nv_permlane32_swap_b32 v{l}, v{l+1}\ns_nop 0\nv_add_f32 v{l}, v{l}, v{l+1}')
            e(f's_nop 0\nv_mov_b32 v{l+1}, v{l}\ns_nop 1\nv_permlane16_swap_b32 v{l}, v{l+1}\ns_nop 0\nv_add_f32 v{l}, v{l}, v{l+1}')
        e(f'v_rcp_f32 v{R}, v{LAC+4*qb}')
        e('s_nop 0')
        e(f'v_mov_b32 v{R+1}, v{R}')
        for t in range(4):
            X = acc(qb, 2*t); Y = acc(qb, 2*t+1)
            for r in (X, X+2, Y, Y+2):
                e(f'v_pk_mul_f32 {vr(r,2)}, {vr(r,2)}, {vr(R,2)}')
            T = vPK + 4*t
            e(f'v_cvt_pk_bf16_f32 v{T}, v{X}, v{X+1}')
            e(f'v_cvt_pk_bf16_f32 v{T+1}, v{X+2}, v{X+3}')
            e(f'v_cvt_pk_bf16_f32 v{T+2}, v{Y}, v{Y+1}')
            e(f'v_cvt_pk_bf16_f32 v{T+3}, v{Y+2}, v{Y+3}')
            e(f's_add_u32 s{sT0}, s{sOo}, {(qb*4+t)*1024}')
            e(f'buffer_store_dwordx4 {vr(T,4)}, v{vL16}, {sr(sOW,4)}, s{sT0} offen {self.c.st_flags} ;@ost')
        e(f's_cmp_lg_u32 s{sMH}, {qb >> 1}\ns_cbranch_scc1 L_own_skip{qb}')
        for t in range(4):
            for i in range(4):
                e(f'v_accvgpr_write_b32 a{aOB + (t*2 + (qb & 1))*4 + i}, v{vPK+4*t+i}')
        self.p.label(f'L_own_skip{qb}')

    def publish_o(self):
        e = self.e
        e('s_nop 4')
        self.norm_store(2)
        if self.c.lsum != 'ones': self.norm_store(3)
        e(f'v_mov_b32 v{vT+6}, {LIMIT:#x}')
        e(f'v_cmp_nge_f32 vcc, v{vT+6}, v{LAC}')
        for qb in range(1, 4):
            e(f'v_cmp_nge_f32 s[{sT0}:{sT1}], v{vT+6}, v{LAC+4*qb}')
            e(f's_or_b64 vcc, vcc, s[{sT0}:{sT1}]')
        e(f'''s_cmp_lg_u64 vcc, 0
s_cselect_b32 s{sT2}, 1, 0
s_cmp_eq_u32 s{sRedo}, 0
s_cselect_b32 s{sT2}, s{sT2}, 0
v_mov_b32 v{vT+6}, s{sT2}
s_lshl_b32 s{sT0}, s{sW}, 2
s_add_u32 s{sT0}, s{sT0}, {LDS_FLAG}
v_mov_b32 v{vT+7}, s{sT0}
ds_write_b32 v{vT+7}, v{vT+6}''')
        if self.c.lsum == 'ones': self.norm_store(3)
        e(f'''s_lshl_b32 s{sT0}, s{sB_}, 5
s_add_u32 s{sT1}, s{sT0}, s{sH}
s_lshl_b32 s{sT1}, s{sT1}, 2
s_add_u32 s{sT1}, s{sT1}, s{sW}
s_lshl_b32 s{sT1}, s{sT1}, 7
s_add_u32 s{sT1}, s{sT1}, {FLG_O}
v_mov_b32 v{vT}, s{sT1}
s_lshl_b32 s{sT1}, s{sHG}, 3
s_add_u32 s{sT0}, s{sT0}, s{sT1}
s_lshl_b32 s{sT0}, s{sT0}, 2
s_add_u32 s{sT0}, s{sT0}, s{sW}
s_lshl_b32 s{sT0}, s{sT0}, 7
s_add_u32 s{sT0}, s{sT0}, {FLG_O}
v_lshlrev_b32 v{vT+1}, 5, v{vL16}
v_add_u32 v{vT+1}, s{sT0}, v{vT+1}''')
        self.stamp()

    def o_sync(self):
        e = self.e
        for gam in range(1, 8):
            for x in self.head_of(gam): e(x)
            e(f's_lshl_b32 s{sT3}, s{sHG}, 3\ns_add_u32 s{sT3}, s{sT2}, s{sT3}\ns_lshl_b32 s{sT3}, s{sT3}, 16\ns_add_u32 s{sOS+gam}, s{sT3}, s{sOo}')
            if gam >= 4:
                e(f's_mul_i32 s{sT2}, s{sT2}, {128*1152}\ns_add_u32 s{sWS+gam-4}, s{sT2}, s{sWOo}')
        e(f's_mul_i32 s{sWOm}, s{sW}, 9216')
        e(f's_lshl_b32 s{sT0}, s{sHG}, 2\ns_add_u32 s{sT0}, s{sT0}, s{sW}\ns_mul_i32 s{sT0}, s{sT0}, 18432\ns_mov_b32 s{sT1}, 0x10000000')
        for own in range(4):
            e(f's_cmp_eq_u32 s{sHG}, {own}\ns_cselect_b32 s{sSend+own}, s{sT1}, s{sT0}')
        self.vmwait('ost')
        self.stamp()
        e('s_mov_b64 exec, 1')
        e(f'global_store_dwordx2 v{vT}, {vr(vNON,2)}, s[18:19] sc1 ;@x')
        e('s_mov_b64 exec, 0xff')
        self.poll('o', 8, vT+1)
        e('s_mov_b64 exec, -1')
        self.stamp()

    def o_load(self, gam, t, qx):
        r = aOB + ((gam % 4)*8 + t*2 + qx)*4
        va = vL16 if qx == 0 else vT+2
        return f'buffer_load_dwordx4 {ar(r,4)}, v{va}, {sr(sOW,4)}, s{sOS+gam} offen offset:{t*1024} {self.c.ld_flags} ;@o{gam}t{t}'
    def w_load(self, gam, i):
        return [f's_add_u32 m0, s{sWOm}, {G_BASE[gam % 4] + 3072*(i//3)}',
                f'buffer_load_dwordx4 v{vWOd+i}, {sr(sWO,4)}, s{sWS+gam-4} offen offset:{1024*(i%3)} {self.c.wo_flags} lds ;@wo{gam}']

    def ob_loads(self, gam):
        o = self.head_of(gam) + [f's_lshl_b32 s{sT3}, s{sHG}, 3',
             f's_add_u32 s{sT2}, s{sT2}, s{sT3}', f's_lshl_b32 s{sT2}, s{sT2}, 16', f's_add_u32 s{sT2}, s{sT2}, s{sOo}']
        for t in range(4):
            for qx in range(2):
                r = aOB + ((gam % 4)*8 + t*2 + qx)*4
                va = vL16 if qx == 0 else vT+2
                o.append(f'buffer_load_dwordx4 {ar(r,4)}, v{va}, {sr(sOW,4)}, s{sT2} offen offset:{t*1024} {self.c.ld_flags} ;@o{gam}')
        return o

    def o_phase(self):
        e = self.e
        e(f'''s_lshl_b32 s{sT0}, s{sW}, 14
s_lshl_b32 s{sT1}, s{sMH}, 13
s_add_u32 s{sOo}, s{sT0}, s{sT1}
v_add_u32 v{vT+2}, 4096, v{vL16}''')
        for k in range(4): e(f'v_add_u32 v{vT+4+k}, {G_BASE[k]}, v{vWOr}')
        def wbuf(gam, t): return 64 if (gam*4 + t) % 2 == 0 else 0
        def wreads(gam, t):
            a = vT + 4 + gam % 4
            return [f'ds_read_b64_tr_b16 {ar(wbuf(gam,t)+4*nu+2*jj,2)}, v{a} offset:{t*9216 + jj*4608 + nu*32}' for nu in range(9) for jj in range(2)]
        self.vmwait('wo0', ' lgkmcnt(0)')
        e('s_barrier')
        e(f'v_mov_b32 v{vT+8}, {LDS_FLAG}')
        e(f'ds_read_b128 {vr(vT+12,4)}, v{vT+8}')
        w0 = wreads(0, 0)
        for x in w0[:14]: e(x)
        e('s_waitcnt lgkmcnt(14)')
        e(f'v_or_b32 v{vT+12}, v{vT+12}, v{vT+13}\nv_or3_b32 v{vT+12}, v{vT+12}, v{vT+14}, v{vT+15}\ns_nop 0\nv_readfirstlane_b32 s{sT0}, v{vT+12}')
        for x in w0[14:]: e(x)
        e(f's_cmp_lg_u32 s{sT0}, 0\ns_cbranch_scc1 L_redo')
        Q = []
        def ol(gam, avail):
            for t in range(4):
                for qx in range(2): Q.append((avail, [self.o_load(gam, t, qx)]))
        def wl(gam, avail):
            for i in range(9): Q.append((avail, self.w_load(gam, i)))
        ol(2, (1,0)); ol(3, (1,0)); wl(4, (1,0)); ol(4, (1,0)); wl(5, (1,3)); ol(5, (2,0)); wl(6, (2,3)); ol(6, (3,0)); wl(7, (3,3)); ol(7, (4,0))
        if 'O' in self.c.abl: Q = [x for x in Q if len(x[1]) != 1]
        if 'W' in self.c.abl: Q = [x for x in Q if len(x[1]) == 1]
        def lastreads(nu):
            a = vT + 4 + 7 % 4
            base = 64 + 16*(nu % 2)
            return [f'ds_read_b64_tr_b16 {ar(base+4*t+2*jj,2)}, v{a} offset:{t*9216 + jj*4608 + nu*32}' for t in range(4) for jj in range(2)]
        for gam in range(7):
            if gam == 1:
                self.o_sync()
                self.stamp('O')
                for t in range(4):
                    for qx in range(2): e(self.o_load(1, t, qx))
            for t in range(4):
                if gam > 0:
                    self.vmwait(f'o{gam}t{t}')
                    if t == 0: self.stamp('O')
                if t == 3:
                    self.vmwait(f'wo{gam+1}', ' lgkmcnt(0)')
                    e('s_barrier')
                mf = []; g = {}
                nxt = (gam, t+1) if t < 3 else (gam+1, 0)
                for nu in range(9):
                    for qx in range(2):
                        d = vr(OACC + (nu*2+qx)*4, 4)
                        first = (gam == 0 and t == 0)
                        b = aOB + ((gam % 4)*8 + t*2 + qx)*4
                        mf.append(f'v_mfma_f32_16x16x32_bf16 {d}, {ar(wbuf(gam,t)+4*nu,4)}, {ar(b,4)}, {"0" if first else d}')
                rd = wreads(*nxt) if nxt != (7, 0) else lastreads(0)
                for i, x in enumerate(rd): g.setdefault(i//2, []).append(x)
                if gam >= 1:
                    for gi in (10, 12, 14, 16):
                        if Q and Q[0][0] <= (gam, t):
                            _, ld = Q.pop(0)
                            if len(ld) == 2: g.setdefault(gi-1, []).append(ld[0])
                            g.setdefault(gi, []).append(ld[-1])
                self.stream(mf, g)
        self.vmwait('o7t3')
        self.stamp('O')
        def send(nu, qx):
            own = qx + 2*(nu >= 5)
            return [f's_add_u32 s{sT0+qx}, s{sSend+own}, {(qx*9 + nu)*1024}',
                    f'buffer_store_dwordx4 {vr(OACC + (nu*2+qx)*4, 4)}, v{vL16}, {sr(sPT,4)}, s{sT0+qx} offen {self.c.st_flags} ;@pst']
        for nu in range(9):
            mf = []; g = {}
            for t in range(4):
                for qx in range(2):
                    d = vr(OACC + (nu*2+qx)*4, 4)
                    b = aOB + ((7 % 4)*8 + t*2 + qx)*4
                    mf.append(f'v_mfma_f32_16x16x32_bf16 {d}, {ar(64 + 16*(nu % 2) + 4*t, 4)}, {ar(b,4)}, {d}')
            if nu < 8:
                for i, x in enumerate(lastreads(nu+1)): g.setdefault(i//2, []).append(x)
            if nu > 0:
                for qx in range(2):
                    sx = send(nu-1, qx)
                    g.setdefault(4 + 2*qx, []).append(sx[0]); g.setdefault(5 + 2*qx, []).append(sx[1])
            self.stream(mf, g)
        e('s_nop 7')
        for qx in range(2):
            for x in send(8, qx): e(x)
        assert not Q, Q
        self.stamp('O')
        self.stamp()

    def final(self):
        e = self.e
        e(f'''s_lshl_b32 s{sT0}, s{sB_}, 1
s_add_u32 s{sT0}, s{sT0}, s{sMH}
s_lshl_b32 s{sT0}, s{sT0}, 2
s_add_u32 s{sT0}, s{sT0}, s{sNQ}
s_lshl_b32 s{sT0}, s{sT0}, 4
s_add_u32 s{sT0}, s{sT0}, s{sW}
s_lshl_b32 s{sT0}, s{sT0}, 7
s_add_u32 s{sT0}, s{sT0}, {FLG_P}
s_lshl_b32 s{sT1}, s{sHG}, 9
s_add_u32 s{sT1}, s{sT1}, s{sT0}
v_mov_b32 v{vT}, s{sT1}
v_lshlrev_b32 v{vT+1}, 5, v{vL16}
v_add_u32 v{vT+1}, s{sT0}, v{vT+1}''')
        T = vT + 8
        e(f'''v_bfe_u32 v{T}, v{vL16}, 4, 4
v_lshrrev_b32 v{T+1}, 8, v{vL16}
s_and_b32 s{sT0}, s{sHG}, 1
s_lshl_b32 s{sT3}, s{sW}, 6
s_lshl_b32 s{sCnt}, s{sMH}, 5
s_add_u32 s{sT3}, s{sT3}, s{sCnt}
s_lshl_b32 s{sCnt}, s{sT0}, 4
s_add_u32 s{sT3}, s{sT3}, s{sCnt}
v_add_u32 v{T}, s{sT3}, v{T}
v_mul_u32_u24 v{T}, 1152, v{T}
v_lshl_add_u32 v{T}, v{T+1}, 3, v{T}
s_mul_i32 s{sOo}, s{sW}, 18432
s_mul_i32 s{sWOs}, s{sNQ}, 288''')
        e('s_waitcnt vmcnt(0)')
        self.stamp()
        e('s_mov_b64 exec, 1')
        e(f'global_store_dwordx2 v{vT}, {vr(vNON,2)}, s[18:19] sc1')
        e('s_mov_b64 exec, 0xf')
        self.poll('p', 4, vT+1)
        e('s_mov_b64 exec, -1')
        self.stamp()
        for own in range(4):
            qx = own & 1; nus = list(range(5, 9) if own >> 1 else range(5))
            nxt = f'L_fin_v{own+1}' if own < 3 else None
            self.p.label(f'L_fin_v{own}')
            if nxt: e(f's_cmp_lg_u32 s{sHG}, {own}\ns_cbranch_scc1 {nxt}')
            srcs = [s_ for s_ in range(4) if s_ != own]
            for k, nu in enumerate(nus):
                for j, src in enumerate(srcs):
                    r = 80 + (j*5 + k)*4
                    e(f's_add_u32 s{sT3}, s{sOo}, {src*4*18432 + (qx*9+nu)*1024}')
                    e(f'buffer_load_dwordx4 {vr(r,4)}, v{vL16}, {sr(sPT,4)}, s{sT3} offen {self.c.ld_flags}')
            for k, nu in enumerate(nus):
                e(f's_waitcnt vmcnt({3*(len(nus)-1-k) + k})')
                a = OACC + (nu*2+qx)*4
                for i in range(4):
                    e(f'v_add_f32 v{a+i}, v{a+i}, v{80+k*4+i}')
                    e(f'v_add_f32 v{100+k*4+i}, v{100+k*4+i}, v{120+k*4+i}')
                for i in range(4):
                    e(f'v_add_f32 v{a+i}, v{a+i}, v{100+k*4+i}')
                e(f'v_cvt_pk_bf16_f32 v{144+2*k}, v{a}, v{a+1}')
                e(f'v_cvt_pk_bf16_f32 v{144+2*k+1}, v{a+2}, v{a+3}')
                e(f'buffer_store_dwordx2 {vr(144+2*k,2)}, v{T}, {sr(sOUT,4)}, s{sWOs} offen offset:{32*nu} {self.c.out_flags}')
            if nxt: e('s_branch L_fin')

    def redo(self):
        e = self.e
        self.p.label('L_redo')
        e('s_waitcnt vmcnt(0) lgkmcnt(0)')
        e('s_barrier')
        M = vT + 8
        e(f'v_mov_b32 v{M+4}, 0x3f803f80')
        for i in range(4): e(f'v_accvgpr_write_b32 a{aONE+i}, v{M+4}')
        for qb in range(4): e(f'v_mov_b32 v{M+qb}, 0xff800000')
        e(f's_mov_b32 s{sKVo}, s{sKVl}\ns_mov_b32 s{sCnt}, 32')
        self.p.label('L_redo_max')
        nt = ' nt' if self.c.nt else ''
        e(f's_mov_b32 m0, s{sKVl}\ns_nop 0')
        for p_ in range(2): e(f'buffer_load_dwordx4 v{vKVd+p_}, {sr(sK,4)}, s{sKVo} offen offset:{1024*p_}{nt} lds ;@x')
        e(f's_add_u32 s{sKVo}, s{sKVo}, 8192')
        e('s_waitcnt vmcnt(0)\ns_barrier')
        for x in self.k_reads(0).values(): e(x)
        e('s_waitcnt lgkmcnt(0)')
        for qb in range(4):
            for u in range(2):
                d = vr(ACC + (qb*2+u)*4, 4)
                for t in range(4):
                    e(f'v_mfma_f32_16x16x32_bf16 {d}, {ar(aK+(u*4+t)*4,4)}, {ar(aQ+(qb*4+t)*4,4)}, {"0" if t == 0 else d}')
        e('s_nop 7\ns_barrier')
        for qb in range(4):
            r = ACC + qb*8
            for i in range(0, 8, 2): e(f'v_max3_f32 v{M+qb}, v{M+qb}, v{r+i}, v{r+i+1}')
        e(f's_sub_u32 s{sCnt}, s{sCnt}, 1\ns_cmp_lg_u32 s{sCnt}, 0\ns_cbranch_scc1 L_redo_max')
        T = vT
        for qb in range(4): e(f'v_mov_b32 v{T+2*qb}, v{M+qb}') if False else None
        for qb in range(4):
            e(f'v_mov_b32 v{SB+2*qb}, v{M+qb}\nv_mov_b32 v{SB+2*qb+1}, v{M+qb}')
        e('s_nop 1')
        for qb in range(4): e(f'v_permlane32_swap_b32 v{SB+2*qb}, v{SB+2*qb+1}')
        for qb in range(4): e(f'v_max_f32 v{SB+2*qb}, v{SB+2*qb}, v{SB+2*qb+1}')
        for qb in range(4): e(f'v_mov_b32 v{SB+2*qb+1}, v{SB+2*qb}')
        e('s_nop 1')
        for qb in range(4): e(f'v_permlane16_swap_b32 v{SB+2*qb}, v{SB+2*qb+1}')
        for qb in range(4): e(f'v_max_f32 v{SB+2*qb}, v{SB+2*qb}, v{SB+2*qb+1}')
        for qb in range(4):
            for i in range(4): e(f'v_sub_f32 v{NM+4*qb+i}, 0, v{SB+2*qb}')
        e(f's_mov_b32 s{sKVo}, s{sKVl}')
        for x in self.kv_dma(0, doV=False) + self.kv_dma(1) + self.kv_dma(2) + self.kv_dma(3): e(re.sub(r';@\w+', ';@x', x))
        e('s_waitcnt vmcnt(12)\ns_barrier')
        for x in self.k_reads(0).values(): e(x)
        e(f's_waitcnt lgkmcnt(0)\ns_mov_b32 s{sRedo}, 1\ns_branch L_att_units')

    def dump_q(self):
        e = self.e
        e(f's_lshl_b32 s{sT0}, s{sH}, 16\ns_lshl_b32 s{sT1}, s{sW}, 14\ns_add_u32 s{sT0}, s{sT0}, s{sT1}')
        for f in range(16):
            e(f's_add_u32 s{sT1}, s{sT0}, {f*1024}')
            e(f'buffer_store_dwordx4 {ar(aQ+4*f,4)}, v{vL16}, {sr(sOW,4)}, s{sT1} offen')
        e('s_waitcnt vmcnt(0)')

    def build(self):
        c = self.c
        self.setup()
        self.q_phase()
        if c.stop == 'q':
            self.e('s_nop 4'); self.dump_q()
        else:
            self.attention()
            self.stamp()
            self.publish_o()
            if c.stop != 'attn':
                self.o_phase()
                self.final()
        self.p.label('L_fin')
        if c.stamps:
            self.stamp()
            e = self.e; n = self.nstamp
            e('s_waitcnt lgkmcnt(0) vmcnt(0)')
            e(f's_mul_i32 s{sT0}, s2, {8*16}\ns_add_u32 s{sT0}, s{sT0}, 0x0F000000\nv_mov_b32 v{vT}, s{sT0}')
            e(f's_cmp_lg_u32 s{sW}, 0\ns_cbranch_scc1 L_end\ns_mov_b64 exec, 1')
            for i in range(n):
                e(f'v_mov_b32 v{vT+2}, s{sStamp+2*i}\nv_mov_b32 v{vT+3}, s{sStamp+2*i+1}\nglobal_store_dwordx2 v{vT}, {vr(vT+2,2)}, s[18:19] offset:{8*i}\ns_nop 1')
        self.p.label('L_end')
        self.e('s_endpgm')
        if c.stop not in ('q', 'attn'): self.redo()
        lines = resolve_waits(self.p.lines)
        return lines

def len_step(lst, span):
    n = sum(1 for x in lst if x.startswith('buffer_load'))
    m = sum(1 for x in lst if ' m0,' in x)
    return max(1, (span - m) // max(1, n))

LOOPS = ('L_q', 'L_att', 'L_redo_max')
def make_trace(lines, reps=3):
    labels = {l[:-1]: i for i, l in enumerate(lines) if l.endswith(':')}
    loopd = {}
    for i, l in enumerate(lines):
        t = l.strip().split()
        if t and (t[0].startswith('s_cbranch') or t[0] == 's_branch') and len(t) > 1 and t[1] in LOOPS and labels[t[1]] < i:
            loopd[labels[t[1]]] = i
    trace = []; i = 0
    while i < len(lines):
        if i in loopd:
            b = loopd[i]
            trace += list(range(i, b+1)) * reps
            i = b + 1
        else:
            trace.append(i); i += 1
    return trace

VMOPS = ('buffer_load', 'buffer_store', 'global_load', 'global_store', 'global_atomic', 'buffer_atomic')
def resolve_waits(lines):
    trace = make_trace(lines)
    vneed = {}
    hist = []
    SKIP = {'L_o_w0'}
    skipping = None
    for li in trace:
        l = lines[li]; t = l.strip()
        if t.startswith(VMOPS):
            m = re.search(r';@(\w+)', t)
            tag = m.group(1) if m else ''
            if tag == 'x': continue
            hist.append(tag)
        m = re.search(r'vmcnt\(@(@?\w+)@\)', t)
        if m:
            tag = m.group(1)
            if tag == '@Q':
                n = 12
            elif tag == '@Q6':
                n = 12
            else:
                idx = [i for i, x in enumerate(hist) if x == tag]
                n = len(hist) - 1 - idx[-1] if idx else 63
            n = min(n, 63)
            vneed[li] = min(vneed.get(li, 99), n)
    out = []
    for i, l in enumerate(lines):
        if i in vneed: l = re.sub(r'vmcnt\(@@?\w+@\)', f'vmcnt({vneed[i]})', l)
        out.append(l)
    lines = out
    need = {}; q = []
    for li in trace:
        I = parse(lines[li])
        if I is None: continue
        if I.op == 's_waitcnt':
            for tok in I.ops:
                if tok.startswith('lgkmcnt'):
                    n = int(tok[8:-1]); q = q[len(q)-n:] if 0 < n < len(q) else ([] if n == 0 else q)
            continue
        touched = set(I.r + I.srcC + (I.w if I.cls != 'dsr' else []))
        k = None
        for idx, regs in enumerate(q):
            if regs & touched or (I.cls == 'dsr' and regs & set(I.w)): k = idx
        if k is not None:
            n = min(len(q) - 1 - k, 15)
            need[li] = min(need.get(li, 99), n)
            q = q[len(q)-n:] if n > 0 else []
        if I.cls == 'dsr': q.append(set(I.w))
        elif I.cls == 'dsw': q.append(set())
    out = []
    for i, l in enumerate(lines):
        if i in need: out.append(f'  s_waitcnt lgkmcnt({need[i]})')
        out.append(l)
    return out

HDR = f'''; fused q-proj + attention + o-proj, one workgroup per (batch, head); written with my own generator
; @launch grid=(256,1,1) block=(256,1,1) lds=163840
.amdgcn_target "amdgcn-amd-amdhsa--gfx950"
.text
.globl {KN}
.p2align 8
.type {KN},@function
{KN}:
'''
FTR = f'''
.section .rodata,"a"
.p2align 6
.amdhsa_kernel {KN}
  .amdhsa_next_free_vgpr 512
  .amdhsa_next_free_sgpr 102
  .amdhsa_accum_offset 256
  .amdhsa_group_segment_fixed_size 0
  .amdhsa_kernarg_size 64
  .amdhsa_user_sgpr_count 2
  .amdhsa_user_sgpr_kernarg_segment_ptr 1
  .amdhsa_system_sgpr_workgroup_id_x 1
.end_amdhsa_kernel
'''

def assemble_size(body):
    import subprocess, tempfile, os
    with tempfile.TemporaryDirectory() as d:
        s = os.path.join(d, 'k.s'); o = os.path.join(d, 'k.o')
        open(s, 'w').write(HDR + body + FTR)
        r = subprocess.run(['clang', '-x', 'assembler', '-target', 'amdgcn-amd-amdhsa', '-mcpu=gfx950', '-c', s, '-o', o], capture_output=True, text=True)
        if r.returncode: print(r.stderr[:3000]); sys.exit(1)
        r = subprocess.run(['llvm-readelf', '-S', o], capture_output=True, text=True)
        for ln in r.stdout.split('\n'):
            if ' .text ' in ln:
                f = ln.split(); k = f.index('PROGBITS'); return int(f[k+3], 16)
    return 0

def main():
    import argparse
    ap = argparse.ArgumentParser()
    ap.add_argument('-o', default='standalone__mha_block_cached__near_ridge.s')
    for n in ('stamps', 'cyc', 'rot', 'nopf', 'xstamps', 'nont', 'nowarm', 'fakeq'): ap.add_argument('--' + n, action='store_true')
    ap.add_argument('--kvspread', type=int, default=0); ap.add_argument('--woloop', type=int, default=0); ap.add_argument('--lsum', default='ones'); ap.add_argument('--qi', action='store_true'); ap.add_argument('--rotp', default='1,2,0'); ap.add_argument('--stampset', default=''); ap.add_argument('--abl', default=''); ap.add_argument('--outf', default='sc1'); ap.add_argument('--mapping', default='m48'); ap.add_argument('--stop', default=None)
    ap.add_argument('--qflags', default=''); ap.add_argument('--stf', default='sc1'); ap.add_argument('--ldf', default='sc1'); ap.add_argument('--wof', default='')
    a = ap.parse_args()
    c = Cfg(); c.mapping = a.mapping; c.stamps = a.stamps; c.cyc = a.cyc; c.stop = a.stop; c.rot = a.rot
    c.prefetch_code = not a.nopf; c.xstamps = a.xstamps; c.qflags = a.qflags; c.st_flags = a.stf; c.ld_flags = a.ldf; c.wo_flags = a.wof; c.nt = not a.nont; c.warm_wo = not a.nowarm; c.fakeq = a.fakeq; c.abl = a.abl; c.stampset = a.stampset; c.lsum = a.lsum; c.qi = a.qi; c.ra, c.rb, c.rs = map(int, a.rotp.split(',')); c.kvspread = a.kvspread; c.woloop = a.woloop; c.out_flags = a.outf
    g = Gen(c)
    lines = g.build()
    body = '\n'.join(lines)
    if c.prefetch_code:
        est = assemble_size(body.replace('; PFCODE', ''))
        n = max(1, (est - 64) // 4096)
        magic = (65536 + n - 1) // n
        assert all(((v*magic) >> 16) == v//n for v in range(33))
        pf = [f'  s_mul_i32 s{sT3}, s{sT2}, {magic}', f'  s_lshr_b32 s{sT3}, s{sT3}, 16', f'  s_mul_i32 s{sT3}, s{sT3}, {n}',
              f'  s_sub_u32 s{sT2}, s{sT2}, s{sT3}', f'  s_lshl_b32 s{sT2}, s{sT2}, 12', f'  v_add_u32 v{vT}, s{sT2}, v{vT}',
              f'  global_load_dwordx4 {vr(vT+18,4)}, v{vT}, s[100:101]']
        body = body.replace('; PFCODE', '\n'.join(pf))
    body = re.sub(r' *;@\w+', '', body)
    open(a.o, 'w').write(HDR + body + '\n' + FTR)
    ls = body.split('\n')
    check_trace([ls[i] for i in make_trace(ls, reps=2)], 'kernel')
    print('wrote', a.o, 'code bytes ~', assemble_size(body), 'stamps', g.nstamp)

main()
```

```python
import sys, math, struct, re
sys.path.insert(0, 'gen')
from asmlib import *

KN = 'standalone__mha_block_cached__near_ridge_kernel'

class Cfg:
    mapping = 'm48'; stamps = False; cyc = False; stop = None; rot = False; nt = True; prefetch_code = True
    qflags = ''; st_flags = 'sc1'; ld_flags = 'sc1'; wo_flags = ''; xstamps = False; warm_wo = True; fakeq = False; lsum = 'ones'; qi = False; qp = 1; psleep = 0; ra = 1; rb = 2; rs = 0; stampset = ''; abl = ''; out_flags = 'sc1'; kvspread = 0; woloop = 0; tailwo = 1

ACC = 0; LAC = 128; SB = 144; PB = 160; NM = 168
vKr = 184; vVr = 188; vKVd = 196; vWOd = 198; vWOr = 207; vL16 = 208
vXd = 209; vWd = 217; vXr = 221; vWr = 223
vNON = 232
vT = 234
aQ = 0; aK = 64; aV = 96; aONE = 228
aXA, aWA = 132, 148
aXB, aWB = 180, 196
aOB = 128; aWO = 0
OACC = 0
sX, sWQ, sK, sV, sWO, sOW, sPT, sOUT = 20, 24, 28, 32, 36, 40, 44, 48
sB_, sH, sW, sHG, sHH, sMH, sNQ = 52, 53, 54, 55, 56, 57, 58
sXoff, sWoff, sBase, sDelta, sKch, sCnt = 59, 60, 61, 62, 63, 64
sXL, sWL = 65, 66
sKVo, sKVl, sVo = 67, 68, 69
sT0, sT1, sT2, sT3 = 70, 71, 72, 73
sScale = 74
sWOo, sOo = 76, 77
sStamp = 78
sWOs, sWOm = 4, 5
sPrevB = 62
sPB = 3
sOS = 20
sWS = 28
sRot = 6

OFF_P = 0x1100000
PGRP = 4*4*18*1024
FLG_O = 0x2800000
FLG_P = 0x2820000
DUMMY_LDS = 73728
LDS_FLAG = 81920
vPK = 212
sRedo = 7
sSend = 32
LIMIT = 0x4e800000
LDS_Q0 = 16384
G_BASE = [90112, 126976, 36864, 0]
SCALE = math.log2(math.e) / math.sqrt(128.0)
def f32bits(x): return struct.unpack('<I', struct.pack('<f', x))[0]
def acc(qb, tau): return ACC + (qb*8 + tau)*4

class Gen:
    def __init__(self, cfg):
        self.c = cfg; self.p = Prog(); self.nstamp = 0; self.fake_tags = []
    def e(self, s): self.p.e(s)
    def stamp(self, kind='main'):
        if not self.c.stamps: return
        if self.c.stampset == 'O' and kind == 'main' and self.nstamp > 0: return
        if self.c.stampset != 'O' and kind == 'O': return
        i = self.nstamp; self.nstamp += 1
        assert sStamp + 2*i + 1 < 102
        self.e(f'{"s_memtime" if self.c.cyc else "s_memrealtime"} {sr(sStamp+2*i,2)}')
    def stream(self, mfmas, gaps):
        for i, m in enumerate(mfmas):
            self.e(m)
            fl = gaps.get(i, [])
            nonv = [x for x in fl if not x.lstrip().startswith('v_')]
            val = [x for x in fl if x.lstrip().startswith('v_')]
            for x in nonv + val: self.e(x)
        extra = [k for k in gaps if k >= len(mfmas) or k < 0]
        assert not extra, extra
    def spread(self, g, lst, lo, step, last):
        gi = lo; prev_m0 = False
        for x in lst:
            if x.startswith('buffer_load'):
                if prev_m0: gi += 1
                assert gi <= last, (gi, last, x)
                g.setdefault(gi, []).append(x)
                gi += step; prev_m0 = False
            else:
                g.setdefault(min(gi, last), []).append(x)
                if ' m0,' in x: prev_m0 = True
    def vmwait(self, tag, extra=''):
        self.e(f's_waitcnt vmcnt(@{tag}@){extra}')

    def setup(self):
        c = self.c; e = self.e
        e('s_cmp_ge_u32 s2, 256\ns_cbranch_scc1 L_end\ns_load_dwordx16 s[4:19], s[0:1], 0')
        self.stamp()
        if c.prefetch_code:
            e('s_getpc_b64 s[100:101]')
            e(f'v_lshlrev_b32 v{vT}, 4, v0')
            e(f's_lshr_b32 s{sT2}, s2, 3')
            e('; PFCODE')
        if c.mapping == 'A':
            e(f's_and_b32 s{sB_}, s2, 7\ns_lshr_b32 s{sH}, s2, 3')
        else:
            e(f'''s_and_b32 s{sT0}, s2, 7
s_lshr_b32 s{sT1}, s2, 3
s_and_b32 s{sB_}, s{sT1}, 3
s_and_b32 s{sT2}, s{sT0}, 1
s_lshl_b32 s{sT2}, s{sT2}, 2
s_add_u32 s{sB_}, s{sB_}, s{sT2}
s_lshr_b32 s{sT1}, s{sT1}, 2
s_lshr_b32 s{sT0}, s{sT0}, 1
s_lshl_b32 s{sH}, s{sT0}, 3
s_add_u32 s{sH}, s{sH}, s{sT1}''')
        e(f'''s_lshr_b32 s{sHG}, s{sH}, 3
s_and_b32 s{sHH}, s{sH}, 7
s_and_b32 s{sMH}, s{sHH}, 1
s_lshr_b32 s{sNQ}, s{sHH}, 1''')
        if c.rot:
            if c.mapping == 'A':
                e(f's_mov_b32 s{sT0}, s{sH}')
            else:
                e(f's_and_b32 s{sT0}, s{sB_}, 3\ns_mul_i32 s{sT0}, s{sT0}, {c.rb}\ns_lshr_b32 s{sT1}, s{sHH}, {c.rs}\ns_mul_i32 s{sT1}, s{sT1}, {c.ra}\ns_add_u32 s{sT0}, s{sT0}, s{sT1}')
            e(f'''s_mul_i32 s{sT1}, s{sT0}, 57
s_lshr_b32 s{sT1}, s{sT1}, 9
s_mul_i32 s{sT1}, s{sT1}, 9
s_sub_u32 s{sKch}, s{sT0}, s{sT1}''')
        else:
            e(f's_mov_b32 s{sKch}, 0')
        L, Q, G, C_, R, T0, T1, T2 = vT+2, vT+3, vT+4, vT+5, vT+6, vT+7, vT+8, vT+9
        self.lanevars = (L, Q, G, C_, R, T0, T1, T2)
        e(f'''v_lshrrev_b32 v{T0}, 6, v0
v_and_b32 v{L}, 63, v0
v_readfirstlane_b32 s{sW}, v{T0}
v_and_b32 v{Q}, 15, v{L}
v_lshrrev_b32 v{G}, 4, v{L}
v_and_b32 v{C_}, 3, v{L}
v_bfe_u32 v{R}, v{L}, 2, 2
v_lshlrev_b32 v{vL16}, 4, v{L}''')
        e(f'v_lshrrev_b32 v{T0}, 3, v{L}')
        e(f's_lshl_b32 s{sT0}, s{sW}, 6')
        e(f'v_add_u32 v{T0}, s{sT0}, v{T0}')
        e(f'v_mul_u32_u24 v{T0}, 1152, v{T0}')
        e(f'v_and_b32 v{T1}, 7, v{L}')
        for par in range(2):
            e(f'v_add_u32 v{T2}, {4*par}, v{G}')
            e(f'v_xor_b32 v{T2}, v{T2}, v{T1}')
            e(f'v_lshl_add_u32 v{T2}, v{T2}, 4, v{T0}')
            for i in range(par, 8, 2):
                e(f'v_add_u32 v{vXd+i}, {8*i*1152 - 1024*(i&3)}, v{T2}')
        e(f's_lshl_b32 s{sT0}, s{sW}, 4')
        e(f'v_add_u32 v{T0}, s{sT0}, v{G}')
        e(f'v_lshlrev_b32 v{T0}, 13, v{T0}')
        for hi in range(2):
            e(f'v_lshlrev_b32 v{T2}, 1, v{G}')
            if hi: e(f'v_or_b32 v{T2}, 8, v{T2}')
            e(f'v_xor_b32 v{T2}, v{T2}, v{Q}')
            e(f'v_lshl_add_u32 v{T2}, v{T2}, 4, v{T0}')
            for i in (2*hi, 2*hi+1):
                e(f'v_add_u32 v{vWd+i}, {4*i*8192 - 1024*i}, v{T2}')
        e('s_waitcnt lgkmcnt(0)')
        if c.xstamps: self.stamp()
        e(f'''s_mul_i32 s{sT0}, s{sB_}, 294912
s_add_u32 s{sX}, s4, s{sT0}
s_addc_u32 s{sX+1}, s5, 0
s_mov_b32 s{sX+2}, 294912
s_mov_b32 s{sX+3}, 0x20000
s_lshl_b32 s{sT0}, s{sH}, 8
s_add_u32 s{sWQ}, s10, s{sT0}
s_addc_u32 s{sWQ+1}, s11, 0
s_sub_u32 s{sWQ+2}, 4718592, s{sT0}
s_mov_b32 s{sWQ+3}, 0x20000
s_lshl_b32 s{sXL}, s{sW}, 13
s_lshl_b32 s{sWL}, s{sW}, 12
s_add_u32 s{sWL}, s{sWL}, 32768
s_lshl_b32 s{sXoff}, s{sKch}, 7
s_lshl_b32 s{sWoff}, s{sKch}, 19''')
        if c.fakeq:
            e(f's_mov_b32 s{sX}, s4\ns_mov_b32 s{sX+1}, s5\ns_mov_b32 s{sWQ}, s10\ns_mov_b32 s{sWQ+1}, s11\ns_mov_b32 s{sXoff}, 0\ns_mov_b32 s{sWoff}, 0')
        e(f's_mov_b32 s{sBase}, {LDS_Q0}')
        for x in self.qdma('q0'): e(x)
        for x in self.advance_kch(): e(x)
        if c.xstamps: self.stamp()
        e(f'''s_or_b32 s{sT0}, s{sW}, s{sH}
s_cmp_lg_u32 s{sT0}, 0
s_cbranch_scc1 L_nonce_done
s_memrealtime s[{sT0}:{sT1}]
s_lshl_b32 s{sT2}, s{sB_}, 3
v_mov_b32 v{vT+12}, s{sT2}
s_waitcnt lgkmcnt(0)
s_or_b32 s{sT0}, s{sT0}, 1
v_mov_b32 v{vT+14}, s{sT0}
v_mov_b32 v{vT+15}, s{sT1}
s_mov_b64 exec, 1
global_store_dwordx2 v{vT+12}, {vr(vT+14,2)}, s[16:17] sc1 ;@x
s_mov_b64 exec, -1''')
        self.p.label('L_nonce_done')
        self.setup_early()
        if c.xstamps: self.stamp()
        e(f's_mov_b32 s{sBase}, {LDS_Q0+49152}')
        for x in self.qdma('q1'): e(x)
        for x in self.advance_kch(): e(x)

    def advance_kch(self):
        if self.c.fakeq: return ['s_nop 0']
        return [f's_add_u32 s{sKch}, s{sKch}, 1', f's_cmp_eq_u32 s{sKch}, 9', f's_cselect_b32 s{sKch}, 0, s{sKch}',
                f's_lshl_b32 s{sXoff}, s{sKch}, 7', f's_lshl_b32 s{sWoff}, s{sKch}, 19']

    def qdma(self, tag, base=None, half=None):
        b = sBase if base is None else base
        fl = self.c.qflags
        o = []
        xs = range(8) if half is None else (range(6) if half == 0 else range(6, 8))
        cur = None
        for i in xs:
            if cur != i >> 2:
                cur = i >> 2
                if cur == 0: o.append(f's_add_u32 m0, s{b}, s{sXL}')
                elif i == 4: o.append('s_add_u32 m0, m0, 4096')
                else:
                    o.append(f's_add_u32 s{sT0}, s{b}, s{sXL}'); o.append(f's_add_u32 m0, s{sT0}, 4096')
                o.append('s_nop 0')
            o.append(f'buffer_load_dwordx4 v{vXd+i}, {sr(sX,4)}, s{sXoff} offen offset:{1024*(i&3)} {fl} lds ;@{tag}')
        if half != 0:
            o.append(f's_add_u32 m0, s{b}, s{sWL}')
            o.append('s_nop 0')
            for i in range(4): o.append(f'buffer_load_dwordx4 v{vWd+i}, {sr(sWQ,4)}, s{sWoff} offen offset:{1024*i} {fl} lds ;@{tag}')
        return o

    def setup_early(self):
        e = self.e
        L, Q, G, C_, R, T0, T1, T2 = self.lanevars
        e(f'''v_lshrrev_b32 v{T0}, 1, v{Q}
v_lshlrev_b32 v{T1}, 7, v{Q}
s_add_u32 s{sT0}, s{sXL}, {LDS_Q0}
v_add_u32 v{T1}, s{sT0}, v{T1}''')
        for ks in range(2):
            e(f'v_add_u32 v{T2}, {4*ks}, v{G}\nv_xor_b32 v{T2}, v{T2}, v{T0}\nv_lshl_add_u32 v{vXr+ks}, v{T2}, 4, v{T1}')
        e(f'''v_lshl_add_u32 v{T0}, v{G}, 3, v{R}
v_lshlrev_b32 v{T1}, 8, v{T0}
v_and_b32 v{T2}, 1, v{C_}
v_lshl_add_u32 v{T1}, v{T2}, 3, v{T1}
v_add_u32 v{T1}, {LDS_Q0+32768}, v{T1}
v_and_b32 v{T0}, 1, v{G}
v_lshl_add_u32 v{T0}, v{T0}, 2, v{R}
v_lshlrev_b32 v{T0}, 1, v{T0}
v_lshrrev_b32 v{T2}, 1, v{C_}
v_xor_b32 v{T0}, v{T0}, v{T2}''')
        for tau in range(8):
            e(f'v_xor_b32 v{T2}, {2*tau}, v{T0}\nv_lshl_add_u32 v{vWr+tau}, v{T2}, 4, v{T1}')

    def deferred_kv(self):
        L, Q, G, C_, R, T0, T1, T2 = self.lanevars
        o = []
        def e(t): o.extend(x for x in t.split('\n') if x.strip())
        e(f'v_and_b32 v{T0}, 7, v{Q}\nv_lshlrev_b32 v{T0}, 1, v{T0}\nv_lshlrev_b32 v{T1}, 8, v{Q}')
        for t in range(4):
            e(f'v_add_u32 v{T2}, {4*t}, v{G}\nv_xor_b32 v{T2}, v{T2}, v{T0}\nv_lshl_add_u32 v{vKr+t}, v{T2}, 4, v{T1}')
        e(f'''v_lshl_add_u32 v{T0}, v{G}, 2, v{R}
v_lshlrev_b32 v{T1}, 8, v{T0}
v_and_b32 v{T0}, 7, v{T0}
v_lshlrev_b32 v{T0}, 1, v{T0}
v_and_b32 v{T2}, 1, v{C_}
v_lshl_add_u32 v{T1}, v{T2}, 3, v{T1}
v_lshrrev_b32 v{T2}, 1, v{C_}
v_xor_b32 v{T0}, v{T0}, v{T2}''')
        for tau in range(8):
            e(f'v_xor_b32 v{T2}, {2*tau}, v{T0}\nv_lshl_add_u32 v{vVr+tau}, v{T2}, 4, v{T1}')
        e(f'v_lshlrev_b32 v{T1}, 8, v{G}')
        for p_ in range(2):
            e(f'v_add_u32 v{T2}, {4*p_}, v{G}\nv_lshlrev_b32 v{T2}, 1, v{T2}\nv_xor_b32 v{T2}, v{T2}, v{Q}\nv_lshl_add_u32 v{vKVd+p_}, v{T2}, 4, v{T1}')
        e(f'v_mov_b32 v{T0}, 0x3f803f80')
        for i in range(4): e(f'v_accvgpr_write_b32 a{aONE+i}, v{T0}')
        e(f'''s_lshl_b32 s0, s{sB_}, 5
s_add_u32 s0, s0, s{sH}
s_lshl_b32 s0, s0, 18
s_add_u32 s{sK}, s6, s0
s_addc_u32 s{sK+1}, s7, 0
s_mov_b32 s{sK+2}, 262144
s_mov_b32 s{sK+3}, 0x20000
s_add_u32 s{sV}, s8, s0
s_addc_u32 s{sV+1}, s9, 0
s_mov_b32 s{sV+2}, 262144
s_mov_b32 s{sV+3}, 0x20000
s_lshl_b32 s{sKVl}, s{sW}, 11
s_mov_b32 s{sKVo}, s{sKVl}
s_mov_b32 s{sScale}, {f32bits(SCALE):#x}
s_mov_b32 s{sScale+1}, {f32bits(SCALE):#x}''')
        return o

    def deferred_wo(self):
        L, Q, G, C_, R, T0, T1, T2 = self.lanevars
        o = []
        def e(t): o.extend(x for x in t.split('\n') if x.strip())
        for i in range(9):
            e(f'''v_add_u32 v{T0}, {64*i}, v{L}
v_mul_u32_u24 v{T1}, 3641, v{T0}
v_lshrrev_b32 v{T1}, 16, v{T1}
v_mul_u32_u24 v{T2}, 18, v{T1}
v_sub_u32 v{T2}, v{T0}, v{T2}
v_mul_u32_u24 v{T1}, 1152, v{T1}
v_lshl_add_u32 v{T1}, v{T2}, 4, v{T1}
v_subrev_u32 v{vWOd+i}, {1024*(i%3)}, v{T1}''')
        e(f'v_lshl_add_u32 v{T0}, v{G}, 2, v{R}\nv_mul_u32_u24 v{T0}, 288, v{T0}\nv_lshl_add_u32 v{vWOr}, v{C_}, 3, v{T0}')
        e(f'''s_mov_b32 s{sWO}, s12
s_mov_b32 s{sWO+1}, s13
s_mov_b32 s{sWO+2}, 4718592
s_mov_b32 s{sWO+3}, 0x20000
s_lshl_b32 s0, s{sB_}, 21
s_add_u32 s{sOW}, s18, s0
s_addc_u32 s{sOW+1}, s19, 0
s_mov_b32 s{sOW+2}, 0x200000
s_mov_b32 s{sOW+3}, 0x20000
s_lshl_b32 s0, s{sB_}, 3
s_lshl_b32 s1, s{sMH}, 2
s_add_u32 s0, s0, s1
s_add_u32 s0, s0, s{sNQ}
s_mul_i32 s0, s0, {PGRP}
s_add_u32 s0, s0, {OFF_P}
s_add_u32 s{sPT}, s18, s0
s_addc_u32 s{sPT+1}, s19, 0
s_mov_b32 s{sPT+2}, {PGRP}
s_mov_b32 s{sPT+3}, 0x20000
s_mul_i32 s0, s{sB_}, 294912
s_add_u32 s{sOUT}, s14, s0
s_addc_u32 s{sOUT+1}, s15, 0
s_mov_b32 s{sOUT+2}, 294912
s_mov_b32 s{sOUT+3}, 0x20000
s_lshl_b32 s0, s{sW}, 5
s_lshl_b32 s1, s{sHG}, 10
s_add_u32 s0, s0, s1
s_mul_i32 s0, s0, 1152
s_mul_i32 s1, s{sNQ}, 288
s_add_u32 s{sWOo}, s0, s1''')
        if self.c.mapping == 'A': e(f's_mov_b32 s{sRot}, 0')
        else: e(f's_and_b32 s{sRot}, s{sB_}, 3\ns_lshl_b32 s{sRot}, s{sRot}, 1')
        e(f's_mov_b32 s{sRedo}, 0')
        return o

    def defer(self, g, lst, lo, hi):
        gi = lo; cnt = 0; lastv = False
        i = 0
        while i < len(lst):
            x = lst[i]; isv = x.startswith('v_')
            grp = [x]
            if x.startswith('s_add_u32') and i + 1 < len(lst) and lst[i+1].startswith('s_addc'): grp.append(lst[i+1])
            if cnt >= 2 or (not isv and lastv): gi += 1; cnt = 0; lastv = False
            assert gi <= hi, (gi, hi, len(lst) - i)
            g.setdefault(gi, []).extend(grp)
            cnt += len(grp); lastv = lastv or isv
            i += len(grp)
        return gi

    def q_reads(self, ks, aX, aW):
        xs = [f'ds_read_b128 {ar(aX+4*qb,4)}, v{vXr+ks} offset:{qb*2048}' for qb in range(4)]
        ws_ = [f'ds_read_b64_tr_b16 {ar(aW+4*tau+2*jj,2)}, v{vWr+tau} offset:{ks*8192+jj*1024}' for tau in range(8) for jj in range(2)]
        return [xs[0], ws_[0], ws_[1]] + xs[1:] + ws_[2:]
    def q_mfmas(self, aX, aW, first=False):
        m = []
        for tau in range(8):
            for qb in range(4):
                d = vr(acc(qb, tau), 4)
                m.append(f'v_mfma_f32_16x16x32_bf16 {d}, {ar(aW+4*tau,4)}, {ar(aX+4*qb,4)}, {"0" if first else d}')
        return m
    def kv_dma(self, stage, doK=True, doV=True):
        slot = (stage % 4) * 16384
        nt = ' nt' if self.c.nt else ''
        tag = f'st{stage % 4}'
        o = []
        if doK:
            o.append(f's_add_u32 m0, s{sKVl}, {slot}'); o.append('s_nop 0')
            for p_ in range(2): o.append(f'buffer_load_dwordx4 v{vKVd+p_}, {sr(sK,4)}, s{sKVo} offen offset:{1024*p_}{nt} lds ;@{tag}')
        if doV:
            o.append(f's_add_u32 m0, s{sKVl}, {slot+8192}'); o.append('s_nop 0')
            for p_ in range(2): o.append(f'buffer_load_dwordx4 v{vKVd+p_}, {sr(sV,4)}, s{sVo} offen offset:{1024*p_}{nt} lds ;@{tag}')
        o.append(f's_mov_b32 s{sVo}, s{sKVo}')
        o.append(f's_add_u32 s{sKVo}, s{sKVo}, 8192')
        return o
    def kv_one(self, stage, which):
        slot = (stage % 4) * 16384
        nt = ' nt' if self.c.nt else ''
        isV = which >= 2; p_ = which & 1
        srd = sV if isV else sK; so = sVo if isV else sKVo
        return [f's_add_u32 m0, s{sKVl}, {slot + (8192 if isV else 0)}',
                f'buffer_load_dwordx4 v{vKVd+p_}, {sr(srd,4)}, s{so} offen offset:{1024*p_}{nt} lds ;@st{stage % 4}']
    def wo_one(self, i, tag):
        return [f's_add_u32 m0, s{sWOm}, {3072*(i//3)}',
                f'buffer_load_dwordx4 v{vWOd+i}, {sr(sWO,4)}, s{sWOs} offen offset:{1024*(i%3)} {self.c.wo_flags} lds ;@{tag}']
    def k_reads(self, tile):
        slot = (tile % 4) * 16384
        return {(u, t): f'ds_read_b128 {ar(aK+(u*4+t)*4,4)}, v{vKr+t} offset:{slot+4096*u}' for u in range(2) for t in range(4)}
    def v_reads(self, tile):
        slot = ((tile+1) % 4) * 16384 + 8192
        return {(tau, jj): f'ds_read_b64_tr_b16 {ar(aV+tau*4+2*jj,2)}, v{vVr+tau} offset:{slot+4096*jj}' for tau in range(8) for jj in range(2)}

    def q_chunk(self, c, first=False, p1=None, p2=None, wait_tag=None, last=False, d1=None, d2=None):
        e = self.e
        e('s_waitcnt lgkmcnt(0)')
        g = {}
        qp = self.c.qp
        for i, r in enumerate(self.q_reads(1, aXB, aWB)): g.setdefault(i // 2 if qp == 3 else i, []).append(r)
        if p1:
            nl = sum(1 for x in p1 if x.startswith('buffer_load'))
            pl = [x for x in p1 if x != 's_nop 0']
            if nl <= 6:
                if qp == 1: self.spread(g, pl, 19, 2, 31)
                elif qp == 2: self.spread(g, pl, 18, 2, 31)
                elif qp == 3: self.spread(g, pl, 11, 3, 31)
                elif qp == 4: self.spread(g, pl, 1, 5, 31)
                elif qp == 5: self.spread(g, pl, 20, 1, 31)
            else: self.spread(g, pl, 1, len_step(p1, 30), 31)
        if d1: self.defer(g, d1, 0, 31)
        g = self.qabl(g)
        self.stream(self.q_mfmas(aXA, aWA, first=first), g)
        self.vmwait(wait_tag, ' lgkmcnt(0)')
        if 'B' not in self.c.abl: e('s_barrier')
        g = {}
        if not last:
            for x in [f's_mov_b32 s{sDelta}, 49152', f's_cmp_eq_u32 s{sBase}, {LDS_Q0+2*49152}', f's_cselect_b32 s{sDelta}, {(-98304) & 0xffffffff:#x}, s{sDelta}']: e(x)
            upd = [f'v_add_u32 v{r}, s{sDelta}, v{r}' for r in list(range(vXr, vXr+2)) + list(range(vWr, vWr+8))]
            for i, u in enumerate(upd): g.setdefault(i//2, []).append(u)
            for i, r in enumerate(self.q_reads(0, aXA, aWA)): g.setdefault(5 + (i // 2 if qp == 3 else i), []).append(r)
            g.setdefault(0, []).insert(0, f's_mov_b32 s{sPB}, s{sBase}')
            g.setdefault(0, []).insert(1, f's_add_u32 s{sBase}, s{sBase}, s{sDelta}')
        else:
            for i, r in enumerate(self.k_reads(0).values()): g.setdefault(2 + i, []).append(r)
        if p2:
            nl = sum(1 for x in p2 if x.startswith('buffer_load'))
            pl = [x for x in p2 if x != 's_nop 0']
            if nl <= 6 and qp == 2:
                k = [i for i, x in enumerate(pl) if x.startswith('buffer_load')]
                self.spread(g, pl[:k[1]+1], 0, 2, 4); self.spread(g, pl[k[1]+1:], 22, 2, 31)
            elif nl <= 6 and qp == 3: self.spread(g, pl, 15, 2, 31)
            elif nl <= 6 and qp == 5: self.spread(g, pl, 22, 1, 31)
            else: self.spread(g, pl, 1, len_step(p2, 30), 31)
        if d2: self.defer(g, d2, 6, 31)
        g = self.qabl(g)
        self.stream(self.q_mfmas(aXB, aWB), g)

    def qabl(self, g):
        ab = self.c.abl
        out = {}
        for k, v in g.items():
            out[k] = [x for x in v if not (('D' in ab and x.startswith('buffer_load')) or ('R' in ab and x.startswith('ds_read')))]
        return out
    def q_phase(self):
        e = self.e
        self.vmwait('q0')
        e('s_barrier')
        self.stamp()
        e(f's_mov_b32 s{sBase}, {LDS_Q0}')
        for r in self.q_reads(0, aXA, aWA): e(r)
        e(f's_mov_b32 s{sPB}, {LDS_Q0+2*49152}')
        dk = self.deferred_kv(); dw = self.deferred_wo()
        self.q_chunk(0, first=True, p1=self.qdma('qa', base=sPB) + self.advance_kch(), p2=self.qdma('qb', base=sPB, half=0), wait_tag='q1', d1=dk[:52], d2=dk[52:])
        e(f's_mov_b32 s{sCnt}, 5')
        e('.p2align 4')
        self.p.label('L_q')
        self.q_chunk(1, p1=self.qdma('qb', base=sPB, half=1) + self.advance_kch(), p2=self.qdma('qc', base=sPB, half=0), wait_tag='@Q')
        e(f's_sub_u32 s{sCnt}, s{sCnt}, 1\ns_cmp_lg_u32 s{sCnt}, 0\ns_cbranch_scc1 L_q')
        self.q_chunk(6, p1=self.qdma('q8', base=sPB, half=1), p2=self.kv_dma(0, doV=False) + self.kv_dma(1), wait_tag='@Q6', d1=dw[:56], d2=dw[56:75])
        self.q_chunk(7, p1=self.kv_dma(2), p2=self.kv_dma(3), wait_tag='q8', d1=dw[75:])
        self.q_chunk(8, wait_tag='st0', last=True)
        self.stamp()
        e('s_nop 7')
        slots = []
        it = iter(slots)
        for t in range(4):
            for qb in range(4):
                grp = next(it, [])
                for x in grp[:-1]: e(x)
                pend_load = grp[-1:]
                X = acc(qb, 2*t); Y = acc(qb, 2*t+1)
                for r in (X, X+2, Y, Y+2):
                    e(f'v_pk_mul_f32 {vr(r,2)}, {vr(r,2)}, {sr(sScale,2)}')
                for x in pend_load: e(x)
                T = vT + 4*(qb % 2)
                e(f'v_cvt_pk_bf16_f32 v{T}, v{X}, v{X+1}')
                e(f'v_cvt_pk_bf16_f32 v{T+1}, v{X+2}, v{X+3}')
                e(f'v_cvt_pk_bf16_f32 v{T+2}, v{Y}, v{Y+1}')
                e(f'v_cvt_pk_bf16_f32 v{T+3}, v{Y+2}, v{Y+3}')
                e('s_nop 0')
                e(f'v_permlane32_swap_b32 v{T}, v{T+2}')
                e(f'v_permlane32_swap_b32 v{T+1}, v{T+3}')
                e('s_nop 0')
                e(f'v_permlane16_swap_b32 v{T}, v{T+2}')
                e(f'v_permlane16_swap_b32 v{T+1}, v{T+3}')
                for i in range(4): e(f'v_accvgpr_write_b32 a{aQ+(qb*4+t)*4+i}, v{T+i}')
        for grp in it:
            for x in grp[:-1]: e(x)
            e('s_nop 0'); e(grp[-1])

    def wo_warm(self):
        e = []
        if self.c.mapping == 'A':
            e += [f's_add_u32 s{sT2}, s{sHH}, 4']
        else:
            e += [f's_and_b32 s{sT2}, s{sB_}, 3', f's_lshl_b32 s{sT2}, s{sT2}, 1', f's_add_u32 s{sT2}, s{sT2}, s{sMH}']
        e += [f's_and_b32 s{sT2}, s{sT2}, 7', f's_mul_i32 s{sT2}, s{sT2}, {128*1152}', f's_add_u32 s{sWOs}, s{sT2}, s{sWOo}', f's_mov_b32 s{sWOm}, {DUMMY_LDS}']
        for k in range(3):
            l = self.wo_loads3(k, 'warm')
            e += [l[0], 's_nop 0'] + l[1:]
        return e

    def qk_order(self):
        return [(u, t) for t in range(4) for u in range(2)] if self.c.qi else [(u, t) for u in range(2) for t in range(4)]
    def qk_mfmas(self, qb, sbuf, cinit):
        m = []
        for u, t in self.qk_order():
            d = vr(sbuf + 4*u, 4)
            m.append(f'v_mfma_f32_16x16x32_bf16 {d}, {ar(aK+(u*4+t)*4,4)}, {ar(aQ+(qb*4+t)*4,4)}, {cinit if t == 0 else d}')
        return m
    def pv_mfmas(self, qb, pbuf, first):
        m = []
        for tau in range(8):
            d = vr(acc(qb, tau), 4)
            m.append(f'v_mfma_f32_16x16x32_bf16 {d}, {ar(aV+tau*4,4)}, {vr(pbuf,4)}, {"0" if first else d}')
        if self.c.lsum == 'ones':
            d = vr(LAC + 4*qb, 4)
            m.append(f'v_mfma_f32_16x16x32_bf16 {d}, {ar(aONE,4)}, {vr(pbuf,4)}, {"0" if first else d}')
        return m
    def wo_loads3(self, k, tag):
        o = [f's_add_u32 m0, s{sWOm}, {3072*k}']
        for i in range(3*k, 3*k+3):
            o.append(f'buffer_load_dwordx4 v{vWOd+i}, {sr(sWO,4)}, s{sWOs} offen offset:{1024*(i%3)} {self.c.wo_flags} lds ;@{tag}')
        return o
    def head_of(self, gam):
        if gam == 0: return [f's_mov_b32 s{sT2}, s{sHH}']
        return [f's_add_u32 s{sT2}, s{sRot}, {gam-1}', f's_sub_u32 s{sT3}, s{sT2}, 7', f's_cmp_ge_u32 s{sT2}, 7', f's_cselect_b32 s{sT2}, s{sT3}, s{sT2}',
                f's_add_u32 s{sT2}, s{sT2}, s{sHH}', f's_add_u32 s{sT2}, s{sT2}, 1', f's_and_b32 s{sT2}, s{sT2}, 7']
    def wo_setup(self, gam):
        return self.head_of(gam) + [f's_mul_i32 s{sT2}, s{sT2}, {128*1152}',
                f's_add_u32 s{sWOs}, s{sT2}, s{sWOo}', f's_mul_i32 s{sT3}, s{sW}, 9216', f's_add_u32 s{sWOm}, s{sT3}, {G_BASE[gam % 4]}']
    def wo_dma(self, gam):
        o = self.wo_setup(gam)
        for k in range(3):
            l = self.wo_loads3(k, f'wo{gam}')
            o += [l[0], 's_nop 0'] + l[1:]
        return o

    def unit(self, n, sm=True, pv=True, first_pv=False, skipv=False, wo1=None, pre=None, tail=False):
        e = self.e
        qb = n % 4; tile = n // 4
        if qb == 0:
            if tail and tile + 1 > 32: e('s_waitcnt lgkmcnt(0)')
            else: self.vmwait(f'st{(tile+1) % 4}', ' lgkmcnt(0)')
            e('s_barrier')
        mf = self.qk_mfmas(qb, SB + 8*(n % 2), vr(NM + 4*qb, 4)) if not (tail and n >= 128) else []
        if pv: mf += self.pv_mfmas((n-2) % 4, PB + 4*((n-2) % 2), first_pv)
        N = len(mf)
        g = {}
        def put(i, x): g.setdefault(min(i, N-1), []).append(x)
        if pre:
            for x in pre: put(0, x)
        NF = 17 if self.c.lsum == 'ones' else 16
        full = N >= NF
        if sm and not (tail and n - 1 > 127):
            s = SB + 8*((n-1) % 2); pb = PB + 4*((n-1) % 2)
            if full: eg = [0, 2, 4, 6, 8, 10, 12, 14]; cg = [3, 7, 11, 15]
            elif N == 9: eg = [0, 1, 2, 3, 4, 5, 6, 7]; cg = [2, 4, 6, 8]
            else: eg = [0, 1, 2, 3, 4, 5, 6, 6]; cg = [3, 5, 7, 7]
            for i in range(8): put(eg[i], f'v_exp_f32 v{s+i}, v{s+i}')
            for i in range(4): put(cg[i], f'v_cvt_pk_bf16_f32 v{pb+i}, v{s+2*i}, v{s+2*i+1}')
            lq = LAC + 4*((n-1) % 4)
            if self.c.lsum == 'add':
                ag = [1, 3, 5, 7, 9, 11, 13, 15] if full else [min(x+1, N-1) for x in eg]
                for i in range(8): put(ag[i], f'v_add_f32 v{lq + (i & 1)}, v{lq + (i & 1)}, v{s+i}')
            elif self.c.lsum == 'pk':
                ag = [5, 9, 13, 15] if full else [min(x+1, N-1) for x in cg]
                ag = [3, 7, 11, 15] if full else ag
                for i in range(4): put(ag[i], f'v_pk_add_f32 {vr(lq,2)}, {vr(lq,2)}, {vr(s+2*i,2)}')
        if not self.c.kvspread:
            if qb == 0 and not (tail and tile + 4 > 32):
                d = [x for x in self.kv_dma(tile + 4) if x != 's_nop 0']
                pos = [0, 1, 5, 8, 9, 13, N-1, N-1] if full else [0, 1, 2, 3, 4, 5, N-1, N-1]
                for x, gi in zip(d, pos): put(gi, x)
        elif not (tail and tile + 4 > 32):
            ld = self.kv_one(tile + 4, qb)
            gi = {0: 5, 1: 5, 2: 9, 3: 13}[qb] if N >= 17 else {0: 5, 1: 6, 2: 5, 3: 5}[qb]
            put(gi-1, ld[0]); put(gi, ld[1])
            if qb == 3:
                put(N-1, f's_mov_b32 s{sVo}, s{sKVo}'); put(N-1, f's_add_u32 s{sKVo}, s{sKVo}, 8192')
        if wo1 is not None:
            ld = self.wo_one(wo1, 'wop')
            gi = {0: 13, 1: 1, 2: 13, 3: 16}[qb] if self.c.kvspread else {0: 16, 1: 1, 2: 13, 3: 16}[qb]
            put(gi-1, ld[0]); put(gi, ld[1])
        if qb == 3 and not (tail and tile + 1 > 31):
            kr = self.k_reads(tile + 1)
            if self.c.qi: kp = {(0,0):1, (1,0):1, (0,1):3, (1,1):3, (0,2):5, (1,2):5, (0,3):7, (1,3):9}
            else: kp = {(0,0):1, (0,1):1, (0,2):3, (0,3):3, (1,0):5, (1,1):5, (1,2):7, (1,3):9}
            for k, gi in kp.items(): put(gi, kr[k])
        if qb in (1, 2) and pv and not skipv and not (tail and tile > 31):
            vrd = self.v_reads(tile)
            pl = {(0,0):9, (0,1):9, (1,0):11, (1,1):11, (2,0):13, (2,1):13, (3,0):15, (3,1):16, (4,0):16} if qb == 1 else \
                 {(4,1):1, (5,0):1, (5,1):3, (6,0):3, (6,1):5, (7,0):5, (7,1):7}
            for k, gi in pl.items(): put(gi, vrd[k])
        if tail and self.c.tailwo:
            plan = {118: (0, [0,1,2]), 119: (0, [3,4,5]), 120: (0, [6,7,8]), 121: (1, [0,1]), 122: (1, [2,3,4]), 123: (1, [5,6]),
                    124: (1, [7,8]), 125: (2, [0,1]), 126: (2, [2,3,4]), 127: (2, [5,6,7,8]), 128: (3, [0,1,2,3,4]), 129: (3, [5,6,7,8])}
            free = {0: [1, 9, 13, 16], 1: [1, 5], 2: [9, 13, 16], 3: [11, 13, 16]}
            gam, idxs = plan[n]
            if idxs[0] == 0:
                for x in self.wo_setup(gam): put(0, x)
            fr = free[qb] if full else list(range(1, N))
            if full and tile + 4 > 32 and qb == 0: fr = [1, 5, 9, 13, 16]
            fr = [min(x, N-1) for x in fr]
            if n == 127: fr = [1, 5, 9, 13]
            if n == 123: fr = [11, 13, 16]
            for i, gi in zip(idxs, fr):
                ld = self.wo_one(i, f'wo{gam}')
                put(gi-1, ld[0]); put(gi, ld[1])
            assert len(idxs) <= len(fr), n
        abl = self.c.abl
        if abl and n >= 6:
            for k in list(g):
                keep = []
                for x in g[k]:
                    if 'd' in abl and x.startswith('buffer_load'): continue
                    if 'l' in abl and x.startswith('ds_read'): continue
                    if 'e' in abl and x.startswith('v_exp'): continue
                    if 'c' in abl and x.startswith('v_cvt'): continue
                    keep.append(x)
                g[k] = keep
            if 'o' in abl and pv: mf = mf[:-1]; g = {k: v for k, v in g.items() if k < len(mf)} if False else g;
            if 'o' in abl and pv:
                last = g.pop(16, [])
                g.setdefault(15, []).extend(last)
        self.stream(mf, g)

    def attn_prologue(self):
        e = self.e
        e('s_waitcnt lgkmcnt(0)')
        for qb in range(4):
            d = vr(SB + 4*qb, 4)
            for t in range(4):
                e(f'v_mfma_f32_16x16x32_bf16 {d}, {ar(aK+t*4,4)}, {ar(aQ+(qb*4+t)*4,4)}, {"0" if t == 0 else d}')
        e('s_nop 7')
        for qb in range(4):
            s = SB + 4*qb; T = vT + 2*qb
            e(f'v_max3_f32 v{T}, v{s}, v{s+1}, v{s+2}')
            e(f'v_max_f32 v{T}, v{T}, v{s+3}')
            e(f'v_mov_b32 v{T+1}, v{T}')
        e('s_nop 0')
        for qb in range(4): e(f'v_permlane32_swap_b32 v{vT+2*qb}, v{vT+2*qb+1}')
        for qb in range(4): e(f'v_max_f32 v{vT+2*qb}, v{vT+2*qb}, v{vT+2*qb+1}')
        for qb in range(4): e(f'v_mov_b32 v{vT+2*qb+1}, v{vT+2*qb}')
        e('s_nop 0')
        for qb in range(4): e(f'v_permlane16_swap_b32 v{vT+2*qb}, v{vT+2*qb+1}')
        for qb in range(4): e(f'v_max_f32 v{vT+2*qb}, v{vT+2*qb}, v{vT+2*qb+1}')
        for qb in range(4):
            for i in range(4): e(f'v_sub_f32 v{NM+4*qb+i}, 0, v{vT+2*qb}')
        e('s_nop 1')

    def attention(self):
        e = self.e
        self.attn_prologue()
        self.stamp()
        self.p.label('L_att_units')
        if self.c.lsum != 'ones':
            for qb in range(4): e(f'v_mov_b32 v{LAC+4*qb}, 0\nv_mov_b32 v{LAC+4*qb+1}, 0')
        self.unit(0, sm=False, pv=False)
        for r in self.v_reads(0).values(): e(r)
        self.unit(1, pv=False)
        e('s_waitcnt lgkmcnt(0)')
        if self.c.qi: e('s_nop 1')
        self.unit(2, first_pv=True, skipv=True)
        self.unit(3, first_pv=True)
        self.unit(4, first_pv=True)
        self.unit(5, first_pv=True)
        e(f's_mov_b32 s{sCnt}, 7')
        e('.p2align 4')
        self.p.label('L_att')
        if self.c.mapping == 'A': warm = [f's_add_u32 s{sT1}, s{sHH}, 4']
        else: warm = [f's_and_b32 s{sT1}, s{sB_}, 3', f's_lshl_b32 s{sT1}, s{sT1}, 1', f's_add_u32 s{sT1}, s{sT1}, s{sMH}']
        pre = [f's_sub_u32 s{sT0}, 7, s{sCnt}', f's_add_u32 s{sT2}, s{sHH}, s{sT0}'] + warm + [
               f's_cmp_eq_u32 s{sT0}, 2', f's_cselect_b32 s{sT2}, s{sT1}, s{sT2}',
               f's_and_b32 s{sT2}, s{sT2}, 7', f's_mul_i32 s{sT2}, s{sT2}, {128*1152}',
               f's_add_u32 s{sWOs}, s{sT2}, s{sWOo}', f's_mul_i32 s{sT3}, s{sT0}, 36864', f's_mul_i32 s{sT1}, s{sW}, 9216',
               f's_add_u32 s{sT3}, s{sT3}, s{sT1}', f's_add_u32 s{sWOm}, s{sT3}, {G_BASE[0]}',
               f's_cmp_lt_u32 s{sT0}, 2', f's_cselect_b32 s{sWOm}, s{sWOm}, {DUMMY_LDS}',
               f's_cmp_lt_u32 s{sT0}, {3 if self.c.warm_wo else 2}', f's_cselect_b32 s{sWOs}, s{sWOs}, 4718592']
        won = {7: 0, 8: 1, 10: 2, 11: 3, 12: 4, 14: 5, 16: 6, 18: 7, 20: 8}
        for n in range(6, 22):
            self.unit(n, pre=pre if (n == 6 and self.c.woloop) else None, wo1=won.get(n) if self.c.woloop else None)
        e(f's_sub_u32 s{sCnt}, s{sCnt}, 1\ns_cmp_lg_u32 s{sCnt}, 0\ns_cbranch_scc1 L_att')
        e(f's_lshl_b32 s{sT0}, s{sB_}, 3\nv_mov_b32 v{vNON-1}, s{sT0}')
        e(f'global_load_dwordx2 {vr(vNON,2)}, v{vNON-1}, s[16:17] sc1 ;@non')
        for n in range(118, 130):
            self.unit(n, tail=True)
            if n == 128: e('s_nop 1')
            if n == 127:
                e(f's_lshl_b32 s{sT0}, s{sH}, 16\ns_lshl_b32 s{sT1}, s{sW}, 14\ns_add_u32 s{sOo}, s{sT0}, s{sT1}')
                self.norm_store(0)
            if n == 128: self.norm_store(1)

    def poll(self, name, nl, vaddr):
        e = self.e
        A, B = vT+10, vT+12
        def chk(r):
            return f'''v_cmp_eq_u32 vcc, v{r}, v{vNON}
v_cmp_eq_u32 s[{sT0}:{sT1}], v{r+1}, v{vNON+1}
s_and_b64 vcc, vcc, s[{sT0}:{sT1}]
s_cmp_eq_u32 vcc_lo, {(1 << nl) - 1}
s_cbranch_scc1 L_{name}_ok'''
        e(f's_mov_b32 s{sT2}, 0')
        if self.c.psleep:
            self.p.label(f'L_{name}_poll')
            e(f'global_load_dwordx2 {vr(A,2)}, v{vaddr}, s[18:19] sc1 ;@x')
            e('s_waitcnt vmcnt(0)')
            e(chk(A))
            e(f's_sleep {self.c.psleep}')
            e(f's_add_u32 s{sT2}, s{sT2}, 1\ns_cmp_lt_u32 s{sT2}, 0x40000\ns_cbranch_scc1 L_{name}_poll')
        else:
            e(f'global_load_dwordx2 {vr(A,2)}, v{vaddr}, s[18:19] sc1 ;@x')
            self.p.label(f'L_{name}_poll')
            e(f'global_load_dwordx2 {vr(B,2)}, v{vaddr}, s[18:19] sc1 ;@x')
            e('s_waitcnt vmcnt(1)')
            e(chk(A))
            e(f'global_load_dwordx2 {vr(A,2)}, v{vaddr}, s[18:19] sc1 ;@x')
            e('s_waitcnt vmcnt(1)')
            e(chk(B))
            e(f's_add_u32 s{sT2}, s{sT2}, 1\ns_cmp_lt_u32 s{sT2}, 0x40000\ns_cbranch_scc1 L_{name}_poll')
        self.p.label(f'L_{name}_ok')

    def norm_store(self, qb):
        e = self.e
        R = vT + 4
        if self.c.lsum != 'ones':
            l = LAC + 4*qb
            e(f'v_add_f32 v{l}, v{l}, v{l+1}\ns_nop 0\nv_mov_b32 v{l+1}, v{l}\ns_nop 1\nv_permlane32_swap_b32 v{l}, v{l+1}\ns_nop 0\nv_add_f32 v{l}, v{l}, v{l+1}')
            e(f's_nop 0\nv_mov_b32 v{l+1}, v{l}\ns_nop 1\nv_permlane16_swap_b32 v{l}, v{l+1}\ns_nop 0\nv_add_f32 v{l}, v{l}, v{l+1}')
        e(f'v_rcp_f32 v{R}, v{LAC+4*qb}')
        e('s_nop 0')
        e(f'v_mov_b32 v{R+1}, v{R}')
        for t in range(4):
            X = acc(qb, 2*t); Y = acc(qb, 2*t+1)
            for r in (X, X+2, Y, Y+2):
                e(f'v_pk_mul_f32 {vr(r,2)}, {vr(r,2)}, {vr(R,2)}')
            T = vPK + 4*t
            e(f'v_cvt_pk_bf16_f32 v{T}, v{X}, v{X+1}')
            e(f'v_cvt_pk_bf16_f32 v{T+1}, v{X+2}, v{X+3}')
            e(f'v_cvt_pk_bf16_f32 v{T+2}, v{Y}, v{Y+1}')
            e(f'v_cvt_pk_bf16_f32 v{T+3}, v{Y+2}, v{Y+3}')
            e(f's_add_u32 s{sT0}, s{sOo}, {(qb*4+t)*1024}')
            e(f'buffer_store_dwordx4 {vr(T,4)}, v{vL16}, {sr(sOW,4)}, s{sT0} offen {self.c.st_flags} ;@ost')
        e(f's_cmp_lg_u32 s{sMH}, {qb >> 1}\ns_cbranch_scc1 L_own_skip{qb}')
        for t in range(4):
            for i in range(4):
                e(f'v_accvgpr_write_b32 a{aOB + (t*2 + (qb & 1))*4 + i}, v{vPK+4*t+i}')
        self.p.label(f'L_own_skip{qb}')

    def publish_o(self):
        e = self.e
        e('s_nop 4')
        self.norm_store(2)
        if self.c.lsum != 'ones': self.norm_store(3)
        e(f'v_mov_b32 v{vT+6}, {LIMIT:#x}')
        e(f'v_cmp_nge_f32 vcc, v{vT+6}, v{LAC}')
        for qb in range(1, 4):
            e(f'v_cmp_nge_f32 s[{sT0}:{sT1}], v{vT+6}, v{LAC+4*qb}')
            e(f's_or_b64 vcc, vcc, s[{sT0}:{sT1}]')
        e(f'''s_cmp_lg_u64 vcc, 0
s_cselect_b32 s{sT2}, 1, 0
s_cmp_eq_u32 s{sRedo}, 0
s_cselect_b32 s{sT2}, s{sT2}, 0
v_mov_b32 v{vT+6}, s{sT2}
s_lshl_b32 s{sT0}, s{sW}, 2
s_add_u32 s{sT0}, s{sT0}, {LDS_FLAG}
v_mov_b32 v{vT+7}, s{sT0}
ds_write_b32 v{vT+7}, v{vT+6}''')
        if self.c.lsum == 'ones': self.norm_store(3)
        e(f'''s_lshl_b32 s{sT0}, s{sB_}, 5
s_add_u32 s{sT1}, s{sT0}, s{sH}
s_lshl_b32 s{sT1}, s{sT1}, 2
s_add_u32 s{sT1}, s{sT1}, s{sW}
s_lshl_b32 s{sT1}, s{sT1}, 7
s_add_u32 s{sT1}, s{sT1}, {FLG_O}
v_mov_b32 v{vT}, s{sT1}
s_lshl_b32 s{sT1}, s{sHG}, 3
s_add_u32 s{sT0}, s{sT0}, s{sT1}
s_lshl_b32 s{sT0}, s{sT0}, 2
s_add_u32 s{sT0}, s{sT0}, s{sW}
s_lshl_b32 s{sT0}, s{sT0}, 7
s_add_u32 s{sT0}, s{sT0}, {FLG_O}
v_lshlrev_b32 v{vT+1}, 5, v{vL16}
v_add_u32 v{vT+1}, s{sT0}, v{vT+1}''')
        self.stamp()

    def o_sync(self):
        e = self.e
        for gam in range(1, 8):
            for x in self.head_of(gam): e(x)
            e(f's_lshl_b32 s{sT3}, s{sHG}, 3\ns_add_u32 s{sT3}, s{sT2}, s{sT3}\ns_lshl_b32 s{sT3}, s{sT3}, 16\ns_add_u32 s{sOS+gam}, s{sT3}, s{sOo}')
            if gam >= 4:
                e(f's_mul_i32 s{sT2}, s{sT2}, {128*1152}\ns_add_u32 s{sWS+gam-4}, s{sT2}, s{sWOo}')
        e(f's_mul_i32 s{sWOm}, s{sW}, 9216')
        e(f's_lshl_b32 s{sT0}, s{sHG}, 2\ns_add_u32 s{sT0}, s{sT0}, s{sW}\ns_mul_i32 s{sT0}, s{sT0}, 18432\ns_mov_b32 s{sT1}, 0x10000000')
        for own in range(4):
            e(f's_cmp_eq_u32 s{sHG}, {own}\ns_cselect_b32 s{sSend+own}, s{sT1}, s{sT0}')
        self.vmwait('ost')
        e(f's_mov_b32 s{sT2}, 0')
        self.p.label('L_non')
        e(f'v_or_b32 v{vT+10}, v{vNON}, v{vNON+1}\nv_cmp_ne_u32 vcc, 0, v{vT+10}\ns_cmp_lg_u64 vcc, 0\ns_cbranch_scc1 L_non_ok')
        e(f'global_load_dwordx2 {vr(vNON,2)}, v{vNON-1}, s[16:17] sc1 ;@x\ns_waitcnt vmcnt(0)\ns_add_u32 s{sT2}, s{sT2}, 1\ns_cmp_lt_u32 s{sT2}, 0x40000\ns_cbranch_scc1 L_non')
        self.p.label('L_non_ok')
        self.stamp()
        e('s_mov_b64 exec, 1')
        e(f'global_store_dwordx2 v{vT}, {vr(vNON,2)}, s[18:19] sc1 ;@x')
        e('s_mov_b64 exec, 0xff')
        self.poll('o', 8, vT+1)
        e('s_mov_b64 exec, -1')
        self.stamp()

    def o_load(self, gam, t, qx):
        r = aOB + ((gam % 4)*8 + t*2 + qx)*4
        va = vL16 if qx == 0 else vT+2
        return f'buffer_load_dwordx4 {ar(r,4)}, v{va}, {sr(sOW,4)}, s{sOS+gam} offen offset:{t*1024} {self.c.ld_flags} ;@o{gam}t{t}'
    def w_load(self, gam, i):
        return [f's_add_u32 m0, s{sWOm}, {G_BASE[gam % 4] + 3072*(i//3)}',
                f'buffer_load_dwordx4 v{vWOd+i}, {sr(sWO,4)}, s{sWS+gam-4} offen offset:{1024*(i%3)} {self.c.wo_flags} lds ;@wo{gam}']

    def ob_loads(self, gam):
        o = self.head_of(gam) + [f's_lshl_b32 s{sT3}, s{sHG}, 3',
             f's_add_u32 s{sT2}, s{sT2}, s{sT3}', f's_lshl_b32 s{sT2}, s{sT2}, 16', f's_add_u32 s{sT2}, s{sT2}, s{sOo}']
        for t in range(4):
            for qx in range(2):
                r = aOB + ((gam % 4)*8 + t*2 + qx)*4
                va = vL16 if qx == 0 else vT+2
                o.append(f'buffer_load_dwordx4 {ar(r,4)}, v{va}, {sr(sOW,4)}, s{sT2} offen offset:{t*1024} {self.c.ld_flags} ;@o{gam}')
        return o

    def o_phase(self):
        e = self.e
        e(f'''s_lshl_b32 s{sT0}, s{sW}, 14
s_lshl_b32 s{sT1}, s{sMH}, 13
s_add_u32 s{sOo}, s{sT0}, s{sT1}
v_add_u32 v{vT+2}, 4096, v{vL16}''')
        for k in range(4): e(f'v_add_u32 v{vT+4+k}, {G_BASE[k]}, v{vWOr}')
        def wbuf(gam, t): return 64 if (gam*4 + t) % 2 == 0 else 0
        def wreads(gam, t):
            a = vT + 4 + gam % 4
            return [f'ds_read_b64_tr_b16 {ar(wbuf(gam,t)+4*nu+2*jj,2)}, v{a} offset:{t*9216 + jj*4608 + nu*32}' for nu in range(9) for jj in range(2)]
        self.vmwait('wo0', ' lgkmcnt(0)')
        e('s_barrier')
        e(f'v_mov_b32 v{vT+8}, {LDS_FLAG}')
        e(f'ds_read_b128 {vr(vT+12,4)}, v{vT+8}')
        w0 = wreads(0, 0)
        for x in w0[:14]: e(x)
        e('s_waitcnt lgkmcnt(14)')
        e(f'v_or_b32 v{vT+12}, v{vT+12}, v{vT+13}\nv_or3_b32 v{vT+12}, v{vT+12}, v{vT+14}, v{vT+15}\ns_nop 0\nv_readfirstlane_b32 s{sT0}, v{vT+12}')
        for x in w0[14:]: e(x)
        e(f's_cmp_lg_u32 s{sT0}, 0\ns_cbranch_scc1 L_redo')
        Q = []
        def ol(gam, avail):
            for t in range(4):
                for qx in range(2): Q.append((avail, [self.o_load(gam, t, qx)]))
        def wl(gam, avail):
            for i in range(9): Q.append((avail, self.w_load(gam, i)))
        ol(2, (1,0)); ol(3, (1,0)); wl(4, (1,0)); ol(4, (1,0)); wl(5, (1,3)); ol(5, (2,0)); wl(6, (2,3)); ol(6, (3,0)); wl(7, (3,3)); ol(7, (4,0))
        if 'O' in self.c.abl: Q = [x for x in Q if len(x[1]) != 1]
        if 'W' in self.c.abl: Q = [x for x in Q if len(x[1]) == 1]
        def lastreads(nu):
            a = vT + 4 + 7 % 4
            base = 64 + 16*(nu % 2)
            return [f'ds_read_b64_tr_b16 {ar(base+4*t+2*jj,2)}, v{a} offset:{t*9216 + jj*4608 + nu*32}' for t in range(4) for jj in range(2)]
        for gam in range(7):
            if gam == 1:
                self.o_sync()
                self.stamp('O')
                for t in range(4):
                    for qx in range(2): e(self.o_load(1, t, qx))
            for t in range(4):
                if gam > 0:
                    self.vmwait(f'o{gam}t{t}')
                    if t == 0: self.stamp('O')
                if t == 3:
                    self.vmwait(f'wo{gam+1}', ' lgkmcnt(0)')
                    e('s_barrier')
                mf = []; g = {}
                nxt = (gam, t+1) if t < 3 else (gam+1, 0)
                for nu in range(9):
                    for qx in range(2):
                        d = vr(OACC + (nu*2+qx)*4, 4)
                        first = (gam == 0 and t == 0)
                        b = aOB + ((gam % 4)*8 + t*2 + qx)*4
                        mf.append(f'v_mfma_f32_16x16x32_bf16 {d}, {ar(wbuf(gam,t)+4*nu,4)}, {ar(b,4)}, {"0" if first else d}')
                rd = wreads(*nxt) if nxt != (7, 0) else lastreads(0)
                for i, x in enumerate(rd): g.setdefault(i//2, []).append(x)
                if gam >= 1:
                    for gi in (10, 12, 14, 16):
                        if Q and Q[0][0] <= (gam, t):
                            _, ld = Q.pop(0)
                            if len(ld) == 2: g.setdefault(gi-1, []).append(ld[0])
                            g.setdefault(gi, []).append(ld[-1])
                self.stream(mf, g)
        self.vmwait('o7t3')
        self.stamp('O')
        def send(nu, qx):
            own = qx + 2*(nu >= 5)
            return [f's_add_u32 s{sT0+qx}, s{sSend+own}, {(qx*9 + nu)*1024}',
                    f'buffer_store_dwordx4 {vr(OACC + (nu*2+qx)*4, 4)}, v{vL16}, {sr(sPT,4)}, s{sT0+qx} offen {self.c.st_flags} ;@pst']
        for nu in range(9):
            mf = []; g = {}
            for t in range(4):
                for qx in range(2):
                    d = vr(OACC + (nu*2+qx)*4, 4)
                    b = aOB + ((7 % 4)*8 + t*2 + qx)*4
                    mf.append(f'v_mfma_f32_16x16x32_bf16 {d}, {ar(64 + 16*(nu % 2) + 4*t, 4)}, {ar(b,4)}, {d}')
            if nu < 8:
                for i, x in enumerate(lastreads(nu+1)): g.setdefault(i//2, []).append(x)
            if nu > 0:
                for qx in range(2):
                    sx = send(nu-1, qx)
                    g.setdefault(4 + 2*qx, []).append(sx[0]); g.setdefault(5 + 2*qx, []).append(sx[1])
            self.stream(mf, g)
        e('s_nop 7')
        for qx in range(2):
            for x in send(8, qx): e(x)
        assert not Q, Q
        self.stamp('O')
        self.stamp()

    def final(self):
        e = self.e
        e(f'''s_lshl_b32 s{sT0}, s{sB_}, 1
s_add_u32 s{sT0}, s{sT0}, s{sMH}
s_lshl_b32 s{sT0}, s{sT0}, 2
s_add_u32 s{sT0}, s{sT0}, s{sNQ}
s_lshl_b32 s{sT0}, s{sT0}, 4
s_add_u32 s{sT0}, s{sT0}, s{sW}
s_lshl_b32 s{sT0}, s{sT0}, 7
s_add_u32 s{sT0}, s{sT0}, {FLG_P}
s_lshl_b32 s{sT1}, s{sHG}, 9
s_add_u32 s{sT1}, s{sT1}, s{sT0}
v_mov_b32 v{vT}, s{sT1}
v_lshlrev_b32 v{vT+1}, 5, v{vL16}
v_add_u32 v{vT+1}, s{sT0}, v{vT+1}''')
        T = vT + 8
        e(f'''v_bfe_u32 v{T}, v{vL16}, 4, 4
v_lshrrev_b32 v{T+1}, 8, v{vL16}
s_and_b32 s{sT0}, s{sHG}, 1
s_lshl_b32 s{sT3}, s{sW}, 6
s_lshl_b32 s{sCnt}, s{sMH}, 5
s_add_u32 s{sT3}, s{sT3}, s{sCnt}
s_lshl_b32 s{sCnt}, s{sT0}, 4
s_add_u32 s{sT3}, s{sT3}, s{sCnt}
v_add_u32 v{T}, s{sT3}, v{T}
v_mul_u32_u24 v{T}, 1152, v{T}
v_lshl_add_u32 v{T}, v{T+1}, 3, v{T}
s_mul_i32 s{sOo}, s{sW}, 18432
s_mul_i32 s{sWOs}, s{sNQ}, 288''')
        e('s_waitcnt vmcnt(0)')
        self.stamp()
        e('s_mov_b64 exec, 1')
        e(f'global_store_dwordx2 v{vT}, {vr(vNON,2)}, s[18:19] sc1')
        e('s_mov_b64 exec, -1')
        A = vT + 10
        for own in range(4):
            qx = own & 1; nus = list(range(5, 9) if own >> 1 else range(5))
            nxt = f'L_fin_v{own+1}' if own < 3 else None
            self.p.label(f'L_fin_v{own}')
            if nxt: e(f's_cmp_lg_u32 s{sHG}, {own}\ns_cbranch_scc1 {nxt}')
            srcs = [s_ for s_ in range(4) if s_ != own]
            e(f's_mov_b32 s{sCnt}, {1 << own}')
            e(f's_mov_b32 s{sT2}, 0')
            self.p.label(f'L_pp{own}')
            e('s_mov_b64 exec, 0xf')
            e(f'global_load_dwordx2 {vr(A,2)}, v{vT+1}, s[18:19] sc1')
            e('s_waitcnt vmcnt(0)')
            e(f'v_cmp_eq_u32 vcc, v{A}, v{vNON}\nv_cmp_eq_u32 s[{sT0}:{sT1}], v{A+1}, v{vNON+1}\ns_and_b64 vcc, vcc, s[{sT0}:{sT1}]')
            e('s_mov_b64 exec, -1')
            e(f's_andn2_b32 s{sT0}, vcc_lo, s{sCnt}')
            e(f's_or_b32 s{sCnt}, s{sCnt}, s{sT0}')
            for j, src in enumerate(srcs):
                e(f's_bitcmp1_b32 s{sT0}, {src}\ns_cbranch_scc0 L_pp{own}_{src}')
                for k, nu in enumerate(nus):
                    r = 80 + (j*5 + k)*4
                    e(f's_add_u32 s{sT3}, s{sOo}, {src*4*18432 + (qx*9+nu)*1024}')
                    e(f'buffer_load_dwordx4 {vr(r,4)}, v{vL16}, {sr(sPT,4)}, s{sT3} offen {self.c.ld_flags}')
                self.p.label(f'L_pp{own}_{src}')
            e(f's_add_u32 s{sT2}, s{sT2}, 1\ns_cmp_eq_u32 s{sCnt}, 15\ns_cbranch_scc1 L_ppd{own}')
            if self.c.psleep: e(f's_sleep {self.c.psleep}')
            e(f's_cmp_lt_u32 s{sT2}, 0x40000\ns_cbranch_scc1 L_pp{own}')
            self.p.label(f'L_ppd{own}')
            e('s_waitcnt vmcnt(0)')
            for k, nu in enumerate(nus):
                a = OACC + (nu*2+qx)*4
                for i in range(4):
                    e(f'v_add_f32 v{a+i}, v{a+i}, v{80+k*4+i}')
                    e(f'v_add_f32 v{100+k*4+i}, v{100+k*4+i}, v{120+k*4+i}')
                for i in range(4):
                    e(f'v_add_f32 v{a+i}, v{a+i}, v{100+k*4+i}')
                e(f'v_cvt_pk_bf16_f32 v{144+2*k}, v{a}, v{a+1}')
                e(f'v_cvt_pk_bf16_f32 v{144+2*k+1}, v{a+2}, v{a+3}')
                e(f'buffer_store_dwordx2 {vr(144+2*k,2)}, v{T}, {sr(sOUT,4)}, s{sWOs} offen offset:{32*nu} {self.c.out_flags}')
            if nxt: e('s_branch L_fin')

    def redo(self):
        e = self.e
        self.p.label('L_redo')
        e('s_waitcnt vmcnt(0) lgkmcnt(0)')
        e('s_barrier')
        M = vT + 8
        e(f'v_mov_b32 v{M+4}, 0x3f803f80')
        for i in range(4): e(f'v_accvgpr_write_b32 a{aONE+i}, v{M+4}')
        for qb in range(4): e(f'v_mov_b32 v{M+qb}, 0xff800000')
        e(f's_mov_b32 s{sKVo}, s{sKVl}\ns_mov_b32 s{sCnt}, 32')
        self.p.label('L_redo_max')
        nt = ' nt' if self.c.nt else ''
        e(f's_mov_b32 m0, s{sKVl}\ns_nop 0')
        for p_ in range(2): e(f'buffer_load_dwordx4 v{vKVd+p_}, {sr(sK,4)}, s{sKVo} offen offset:{1024*p_}{nt} lds ;@x')
        e(f's_add_u32 s{sKVo}, s{sKVo}, 8192')
        e('s_waitcnt vmcnt(0)\ns_barrier')
        for x in self.k_reads(0).values(): e(x)
        e('s_waitcnt lgkmcnt(0)')
        for qb in range(4):
            for u in range(2):
                d = vr(ACC + (qb*2+u)*4, 4)
                for t in range(4):
                    e(f'v_mfma_f32_16x16x32_bf16 {d}, {ar(aK+(u*4+t)*4,4)}, {ar(aQ+(qb*4+t)*4,4)}, {"0" if t == 0 else d}')
        e('s_nop 7\ns_barrier')
        for qb in range(4):
            r = ACC + qb*8
            for i in range(0, 8, 2): e(f'v_max3_f32 v{M+qb}, v{M+qb}, v{r+i}, v{r+i+1}')
        e(f's_sub_u32 s{sCnt}, s{sCnt}, 1\ns_cmp_lg_u32 s{sCnt}, 0\ns_cbranch_scc1 L_redo_max')
        T = vT
        for qb in range(4): e(f'v_mov_b32 v{T+2*qb}, v{M+qb}') if False else None
        for qb in range(4):
            e(f'v_mov_b32 v{SB+2*qb}, v{M+qb}\nv_mov_b32 v{SB+2*qb+1}, v{M+qb}')
        e('s_nop 1')
        for qb in range(4): e(f'v_permlane32_swap_b32 v{SB+2*qb}, v{SB+2*qb+1}')
        for qb in range(4): e(f'v_max_f32 v{SB+2*qb}, v{SB+2*qb}, v{SB+2*qb+1}')
        for qb in range(4): e(f'v_mov_b32 v{SB+2*qb+1}, v{SB+2*qb}')
        e('s_nop 1')
        for qb in range(4): e(f'v_permlane16_swap_b32 v{SB+2*qb}, v{SB+2*qb+1}')
        for qb in range(4): e(f'v_max_f32 v{SB+2*qb}, v{SB+2*qb}, v{SB+2*qb+1}')
        for qb in range(4):
            for i in range(4): e(f'v_sub_f32 v{NM+4*qb+i}, 0, v{SB+2*qb}')
        e(f's_mov_b32 s{sKVo}, s{sKVl}')
        for x in self.kv_dma(0, doV=False) + self.kv_dma(1) + self.kv_dma(2) + self.kv_dma(3): e(re.sub(r';@\w+', ';@x', x))
        e('s_waitcnt vmcnt(12)\ns_barrier')
        for x in self.k_reads(0).values(): e(x)
        e(f's_waitcnt lgkmcnt(0)\ns_mov_b32 s{sRedo}, 1\ns_branch L_att_units')

    def dump_q(self):
        e = self.e
        e(f's_lshl_b32 s{sT0}, s{sH}, 16\ns_lshl_b32 s{sT1}, s{sW}, 14\ns_add_u32 s{sT0}, s{sT0}, s{sT1}')
        for f in range(16):
            e(f's_add_u32 s{sT1}, s{sT0}, {f*1024}')
            e(f'buffer_store_dwordx4 {ar(aQ+4*f,4)}, v{vL16}, {sr(sOW,4)}, s{sT1} offen')
        e('s_waitcnt vmcnt(0)')

    def build(self):
        c = self.c
        self.setup()
        self.q_phase()
        if c.stop == 'q':
            self.e('s_nop 4'); self.dump_q()
        else:
            self.attention()
            self.stamp()
            self.publish_o()
            if c.stop != 'attn':
                self.o_phase()
                self.final()
        self.p.label('L_fin')
        if c.stamps:
            self.stamp()
            e = self.e; n = self.nstamp
            e('s_waitcnt lgkmcnt(0) vmcnt(0)')
            e(f's_mul_i32 s{sT0}, s2, {8*16}\ns_add_u32 s{sT0}, s{sT0}, 0x0F000000\nv_mov_b32 v{vT}, s{sT0}')
            e(f's_cmp_lg_u32 s{sW}, 0\ns_cbranch_scc1 L_end\ns_mov_b64 exec, 1')
            for i in range(n):
                e(f'v_mov_b32 v{vT+2}, s{sStamp+2*i}\nv_mov_b32 v{vT+3}, s{sStamp+2*i+1}\nglobal_store_dwordx2 v{vT}, {vr(vT+2,2)}, s[18:19] offset:{8*i}\ns_nop 1')
        self.p.label('L_end')
        self.e('s_endpgm')
        if c.stop not in ('q', 'attn'): self.redo()
        lines = resolve_waits(self.p.lines)
        return lines

def len_step(lst, span):
    n = sum(1 for x in lst if x.startswith('buffer_load'))
    m = sum(1 for x in lst if ' m0,' in x)
    return max(1, (span - m) // max(1, n))

LOOPS = ('L_q', 'L_att', 'L_redo_max')
def make_trace(lines, reps=3):
    labels = {l[:-1]: i for i, l in enumerate(lines) if l.endswith(':')}
    loopd = {}
    for i, l in enumerate(lines):
        t = l.strip().split()
        if t and (t[0].startswith('s_cbranch') or t[0] == 's_branch') and len(t) > 1 and t[1] in LOOPS and labels[t[1]] < i:
            loopd[labels[t[1]]] = i
    trace = []; i = 0
    while i < len(lines):
        if i in loopd:
            b = loopd[i]
            trace += list(range(i, b+1)) * reps
            i = b + 1
        else:
            trace.append(i); i += 1
    return trace

VMOPS = ('buffer_load', 'buffer_store', 'global_load', 'global_store', 'global_atomic', 'buffer_atomic')
def resolve_waits(lines):
    trace = make_trace(lines)
    vneed = {}
    hist = []
    SKIP = {'L_o_w0'}
    skipping = None
    for li in trace:
        l = lines[li]; t = l.strip()
        if t.startswith(VMOPS):
            m = re.search(r';@(\w+)', t)
            tag = m.group(1) if m else ''
            if tag == 'x': continue
            hist.append(tag)
        m = re.search(r'vmcnt\(@(@?\w+)@\)', t)
        if m:
            tag = m.group(1)
            if tag == '@Q':
                n = 12
            elif tag == '@Q6':
                n = 12
            else:
                idx = [i for i, x in enumerate(hist) if x == tag]
                n = len(hist) - 1 - idx[-1] if idx else 63
            n = min(n, 63)
            vneed[li] = min(vneed.get(li, 99), n)
    out = []
    for i, l in enumerate(lines):
        if i in vneed: l = re.sub(r'vmcnt\(@@?\w+@\)', f'vmcnt({vneed[i]})', l)
        out.append(l)
    lines = out
    need = {}; q = []
    for li in trace:
        I = parse(lines[li])
        if I is None: continue
        if I.op == 's_waitcnt':
            for tok in I.ops:
                if tok.startswith('lgkmcnt'):
                    n = int(tok[8:-1]); q = q[len(q)-n:] if 0 < n < len(q) else ([] if n == 0 else q)
            continue
        touched = set(I.r + I.srcC + (I.w if I.cls != 'dsr' else []))
        k = None
        for idx, regs in enumerate(q):
            if regs & touched or (I.cls == 'dsr' and regs & set(I.w)): k = idx
        if k is not None:
            n = min(len(q) - 1 - k, 15)
            need[li] = min(need.get(li, 99), n)
            q = q[len(q)-n:] if n > 0 else []
        if I.cls == 'dsr': q.append(set(I.w))
        elif I.cls == 'dsw': q.append(set())
    out = []
    for i, l in enumerate(lines):
        if i in need: out.append(f'  s_waitcnt lgkmcnt({need[i]})')
        out.append(l)
    return out

HDR = f'''; fused q-proj + attention + o-proj, one workgroup per (batch, head); written with my own generator
; @launch grid=(256,1,1) block=(256,1,1) lds=163840
.amdgcn_target "amdgcn-amd-amdhsa--gfx950"
.text
.globl {KN}
.p2align 8
.type {KN},@function
{KN}:
'''
FTR = f'''
.section .rodata,"a"
.p2align 6
.amdhsa_kernel {KN}
  .amdhsa_next_free_vgpr 512
  .amdhsa_next_free_sgpr 102
  .amdhsa_accum_offset 256
  .amdhsa_group_segment_fixed_size 0
  .amdhsa_kernarg_size 64
  .amdhsa_user_sgpr_count 2
  .amdhsa_user_sgpr_kernarg_segment_ptr 1
  .amdhsa_system_sgpr_workgroup_id_x 1
.end_amdhsa_kernel
'''

def assemble_size(body):
    import subprocess, tempfile, os
    with tempfile.TemporaryDirectory() as d:
        s = os.path.join(d, 'k.s'); o = os.path.join(d, 'k.o')
        open(s, 'w').write(HDR + body + FTR)
        r = subprocess.run(['clang', '-x', 'assembler', '-target', 'amdgcn-amd-amdhsa', '-mcpu=gfx950', '-c', s, '-o', o], capture_output=True, text=True)
        if r.returncode: print(r.stderr[:3000]); sys.exit(1)
        r = subprocess.run(['llvm-readelf', '-S', o], capture_output=True, text=True)
        for ln in r.stdout.split('\n'):
            if ' .text ' in ln:
                f = ln.split(); k = f.index('PROGBITS'); return int(f[k+3], 16)
    return 0

def main():
    import argparse
    ap = argparse.ArgumentParser()
    ap.add_argument('-o', default='standalone__mha_block_cached__near_ridge.s')
    for n in ('stamps', 'cyc', 'norot', 'nopf', 'xstamps', 'nont', 'nowarm', 'fakeq'): ap.add_argument('--' + n, action='store_true')
    ap.add_argument('--kvspread', type=int, default=0); ap.add_argument('--woloop', type=int, default=0); ap.add_argument('--psleep', type=int, default=0); ap.add_argument('--qp', type=int, default=1); ap.add_argument('--lsum', default='ones'); ap.add_argument('--qi', action='store_true'); ap.add_argument('--rotp', default='1,1,1'); ap.add_argument('--stampset', default=''); ap.add_argument('--abl', default=''); ap.add_argument('--outf', default='sc1'); ap.add_argument('--mapping', default='m48'); ap.add_argument('--stop', default=None)
    ap.add_argument('--qflags', default=''); ap.add_argument('--stf', default='sc1'); ap.add_argument('--ldf', default='sc1'); ap.add_argument('--wof', default='')
    a = ap.parse_args()
    c = Cfg(); c.mapping = a.mapping; c.stamps = a.stamps; c.cyc = a.cyc; c.stop = a.stop; c.rot = not a.norot
    c.prefetch_code = not a.nopf; c.xstamps = a.xstamps; c.qflags = a.qflags; c.st_flags = a.stf; c.ld_flags = a.ldf; c.wo_flags = a.wof; c.nt = not a.nont; c.warm_wo = not a.nowarm; c.fakeq = a.fakeq; c.abl = a.abl; c.stampset = a.stampset; c.lsum = a.lsum; c.psleep = a.psleep; c.qp = a.qp; c.qi = a.qi; c.ra, c.rb, c.rs = map(int, a.rotp.split(',')); c.kvspread = a.kvspread; c.woloop = a.woloop; c.out_flags = a.outf
    g = Gen(c)
    lines = g.build()
    body = '\n'.join(lines)
    if c.prefetch_code:
        est = assemble_size(body.replace('; PFCODE', ''))
        n = max(1, (est - 64) // 4096)
        magic = (65536 + n - 1) // n
        assert all(((v*magic) >> 16) == v//n for v in range(33))
        pf = [f'  s_mul_i32 s{sT3}, s{sT2}, {magic}', f'  s_lshr_b32 s{sT3}, s{sT3}, 16', f'  s_mul_i32 s{sT3}, s{sT3}, {n}',
              f'  s_sub_u32 s{sT2}, s{sT2}, s{sT3}', f'  s_lshl_b32 s{sT2}, s{sT2}, 12', f'  v_add_u32 v{vT}, s{sT2}, v{vT}',
              f'  global_load_dwordx4 {vr(vT+18,4)}, v{vT}, s[100:101]']
        body = body.replace('; PFCODE', '\n'.join(pf))
    body = re.sub(r' *;@\w+', '', body)
    open(a.o, 'w').write(HDR + body + '\n' + FTR)
    ls = body.split('\n')
    check_trace([ls[i] for i in make_trace(ls, reps=2)], 'kernel')
    print('wrote', a.o, 'code bytes ~', assemble_size(body), 'stamps', g.nstamp)

main()
```

```python
import sys, math, struct, re
sys.path.insert(0, 'gen')
from asmlib import *

KN = 'standalone__mha_block_cached__near_ridge_kernel'

class Cfg:
    mapping = 'm48'; stamps = False; cyc = False; stop = None; rot = False; nt = True; prefetch_code = True
    qflags = ''; st_flags = 'sc1'; ld_flags = 'sc1'; wo_flags = ''; xstamps = False; warm_wo = True; fakeq = False; lsum = 'ones'; qi = False; qp = 1; psleep = 0; krot = 0; wotouch = 1; outtouch = 0; ra = 1; rb = 2; rs = 0; stampset = ''; abl = ''; out_flags = 'sc1'; kvspread = 0; woloop = 0; tailwo = 1

ACC = 0; LAC = 128; SB = 144; PB = 160; NM = 168
vKr = 184; vVr = 188; vKVd = 196; vWOd = 198; vWOr = 207; vL16 = 208
vXd = 209; vWd = 217; vXr = 221; vWr = 223
vNON = 232
vT = 234
aQ = 0; aK = 64; aV = 96; aONE = 228
aXA, aWA = 132, 148
aXB, aWB = 180, 196
aOB = 128; aWO = 0
OACC = 0
sX, sWQ, sK, sV, sWO, sOW, sPT, sOUT = 20, 24, 28, 32, 36, 40, 44, 48
sB_, sH, sW, sHG, sHH, sMH, sNQ = 52, 53, 54, 55, 56, 57, 58
sXoff, sWoff, sBase, sDelta, sKch, sCnt = 59, 60, 61, 62, 63, 64
sXL, sWL = 65, 66
sKVo, sKVl, sVo = 67, 68, 69
sT0, sT1, sT2, sT3 = 70, 71, 72, 73
sScale = 74
sWOo, sOo = 76, 77
sStamp = 78
sWOs, sWOm = 4, 5
sPrevB = 62
sPB = 3
sOS = 20
sWS = 28
sRot = 6

OFF_P = 0x1100000
PGRP = 4*4*18*1024
FLG_O = 0x2800000
FLG_P = 0x2820000
DUMMY_LDS = 73728
LDS_FLAG = 81920
vPK = 212
sRedo = 7
sSend = 32
LIMIT = 0x4e800000
LDS_Q0 = 16384
G_BASE = [90112, 126976, 36864, 0]
SCALE = math.log2(math.e) / math.sqrt(128.0)
def f32bits(x): return struct.unpack('<I', struct.pack('<f', x))[0]
def acc(qb, tau): return ACC + (qb*8 + tau)*4

class Gen:
    def __init__(self, cfg):
        self.c = cfg; self.p = Prog(); self.nstamp = 0; self.fake_tags = []
    def e(self, s): self.p.e(s)
    def stamp(self, kind='main'):
        if not self.c.stamps: return
        if self.c.stampset in ('O', 'A') and kind == 'main' and self.nstamp > 0: return
        if self.c.stampset != kind and kind in ('O', 'A'): return
        i = self.nstamp; self.nstamp += 1
        assert sStamp + 2*i + 1 < 102
        self.e(f'{"s_memtime" if self.c.cyc else "s_memrealtime"} {sr(sStamp+2*i,2)}')
    def stream(self, mfmas, gaps):
        for i, m in enumerate(mfmas):
            self.e(m)
            fl = gaps.get(i, [])
            nonv = [x for x in fl if not x.lstrip().startswith('v_')]
            val = [x for x in fl if x.lstrip().startswith('v_')]
            for x in nonv + val: self.e(x)
        extra = [k for k in gaps if k >= len(mfmas) or k < 0]
        assert not extra, extra
    def spread(self, g, lst, lo, step, last):
        gi = lo; prev_m0 = False
        for x in lst:
            if x.startswith('buffer_load'):
                if prev_m0: gi += 1
                assert gi <= last, (gi, last, x)
                g.setdefault(gi, []).append(x)
                gi += step; prev_m0 = False
            else:
                g.setdefault(min(gi, last), []).append(x)
                if ' m0,' in x: prev_m0 = True
    def vmwait(self, tag, extra=''):
        self.e(f's_waitcnt vmcnt(@{tag}@){extra}')

    def setup(self):
        c = self.c; e = self.e
        e('s_cmp_ge_u32 s2, 256\ns_cbranch_scc1 L_end\ns_load_dwordx16 s[4:19], s[0:1], 0')
        self.stamp()
        if c.prefetch_code:
            e('s_getpc_b64 s[100:101]')
            e(f'v_lshlrev_b32 v{vT}, 4, v0')
            e(f's_lshr_b32 s{sT2}, s2, 3')
            e('; PFCODE')
        if c.mapping == 'A':
            e(f's_and_b32 s{sB_}, s2, 7\ns_lshr_b32 s{sH}, s2, 3')
        else:
            e(f'''s_and_b32 s{sT0}, s2, 7
s_lshr_b32 s{sT1}, s2, 3
s_and_b32 s{sB_}, s{sT1}, 3
s_and_b32 s{sT2}, s{sT0}, 1
s_lshl_b32 s{sT2}, s{sT2}, 2
s_add_u32 s{sB_}, s{sB_}, s{sT2}
s_lshr_b32 s{sT1}, s{sT1}, 2
s_lshr_b32 s{sT0}, s{sT0}, 1
s_lshl_b32 s{sH}, s{sT0}, 3
s_add_u32 s{sH}, s{sH}, s{sT1}''')
        e(f'''s_lshr_b32 s{sHG}, s{sH}, 3
s_and_b32 s{sHH}, s{sH}, 7
s_and_b32 s{sMH}, s{sHH}, 1
s_lshr_b32 s{sNQ}, s{sHH}, 1''')
        if c.rot:
            if c.mapping == 'A':
                e(f's_mov_b32 s{sT0}, s{sH}')
            else:
                e(f's_and_b32 s{sT0}, s{sB_}, 3\ns_mul_i32 s{sT0}, s{sT0}, {c.rb}\ns_lshr_b32 s{sT1}, s{sHH}, {c.rs}\ns_mul_i32 s{sT1}, s{sT1}, {c.ra}\ns_add_u32 s{sT0}, s{sT0}, s{sT1}')
            e(f'''s_mul_i32 s{sT1}, s{sT0}, 57
s_lshr_b32 s{sT1}, s{sT1}, 9
s_mul_i32 s{sT1}, s{sT1}, 9
s_sub_u32 s{sKch}, s{sT0}, s{sT1}''')
        else:
            e(f's_mov_b32 s{sKch}, 0')
        L, Q, G, C_, R, T0, T1, T2 = vT+2, vT+3, vT+4, vT+5, vT+6, vT+7, vT+8, vT+9
        self.lanevars = (L, Q, G, C_, R, T0, T1, T2)
        e(f'''v_lshrrev_b32 v{T0}, 6, v0
v_and_b32 v{L}, 63, v0
v_readfirstlane_b32 s{sW}, v{T0}
v_and_b32 v{Q}, 15, v{L}
v_lshrrev_b32 v{G}, 4, v{L}
v_and_b32 v{C_}, 3, v{L}
v_bfe_u32 v{R}, v{L}, 2, 2
v_lshlrev_b32 v{vL16}, 4, v{L}''')
        e(f'v_lshrrev_b32 v{T0}, 3, v{L}')
        e(f's_lshl_b32 s{sT0}, s{sW}, 6')
        e(f'v_add_u32 v{T0}, s{sT0}, v{T0}')
        e(f'v_mul_u32_u24 v{T0}, 1152, v{T0}')
        e(f'v_and_b32 v{T1}, 7, v{L}')
        for par in range(2):
            e(f'v_add_u32 v{T2}, {4*par}, v{G}')
            e(f'v_xor_b32 v{T2}, v{T2}, v{T1}')
            e(f'v_lshl_add_u32 v{T2}, v{T2}, 4, v{T0}')
            for i in range(par, 8, 2):
                e(f'v_add_u32 v{vXd+i}, {8*i*1152 - 1024*(i&3)}, v{T2}')
        e(f's_lshl_b32 s{sT0}, s{sW}, 4')
        e(f'v_add_u32 v{T0}, s{sT0}, v{G}')
        e(f'v_lshlrev_b32 v{T0}, 13, v{T0}')
        for hi in range(2):
            e(f'v_lshlrev_b32 v{T2}, 1, v{G}')
            if hi: e(f'v_or_b32 v{T2}, 8, v{T2}')
            e(f'v_xor_b32 v{T2}, v{T2}, v{Q}')
            e(f'v_lshl_add_u32 v{T2}, v{T2}, 4, v{T0}')
            for i in (2*hi, 2*hi+1):
                e(f'v_add_u32 v{vWd+i}, {4*i*8192 - 1024*i}, v{T2}')
        e('s_waitcnt lgkmcnt(0)')
        if c.xstamps: self.stamp()
        e(f'''s_mul_i32 s{sT0}, s{sB_}, 294912
s_add_u32 s{sX}, s4, s{sT0}
s_addc_u32 s{sX+1}, s5, 0
s_mov_b32 s{sX+2}, 294912
s_mov_b32 s{sX+3}, 0x20000
s_lshl_b32 s{sT0}, s{sH}, 8
s_add_u32 s{sWQ}, s10, s{sT0}
s_addc_u32 s{sWQ+1}, s11, 0
s_sub_u32 s{sWQ+2}, 4718592, s{sT0}
s_mov_b32 s{sWQ+3}, 0x20000
s_lshl_b32 s{sXL}, s{sW}, 13
s_lshl_b32 s{sWL}, s{sW}, 12
s_add_u32 s{sWL}, s{sWL}, 32768
s_lshl_b32 s{sXoff}, s{sKch}, 7
s_lshl_b32 s{sWoff}, s{sKch}, 19''')
        if c.fakeq:
            e(f's_mov_b32 s{sX}, s4\ns_mov_b32 s{sX+1}, s5\ns_mov_b32 s{sWQ}, s10\ns_mov_b32 s{sWQ+1}, s11\ns_mov_b32 s{sXoff}, 0\ns_mov_b32 s{sWoff}, 0')
        e(f's_mov_b32 s{sBase}, {LDS_Q0}')
        for x in self.qdma('q0'): e(x)
        for x in self.advance_kch(): e(x)
        if c.xstamps: self.stamp()
        e(f'''s_or_b32 s{sT0}, s{sW}, s{sH}
s_cmp_lg_u32 s{sT0}, 0
s_cbranch_scc1 L_nonce_done
s_memrealtime s[{sT0}:{sT1}]
s_lshl_b32 s{sT2}, s{sB_}, 3
v_mov_b32 v{vT+12}, s{sT2}
s_waitcnt lgkmcnt(0)
s_or_b32 s{sT0}, s{sT0}, 1
v_mov_b32 v{vT+14}, s{sT0}
v_mov_b32 v{vT+15}, s{sT1}
s_mov_b64 exec, 1
global_store_dwordx2 v{vT+12}, {vr(vT+14,2)}, s[16:17] sc1 ;@x
s_mov_b64 exec, -1''')
        self.p.label('L_nonce_done')
        self.setup_early()
        if c.xstamps: self.stamp()
        e(f's_mov_b32 s{sBase}, {LDS_Q0+49152}')
        for x in self.qdma('q1'): e(x)
        for x in self.advance_kch(): e(x)

    def advance_kch(self):
        if self.c.fakeq: return ['s_nop 0']
        return [f's_add_u32 s{sKch}, s{sKch}, 1', f's_cmp_eq_u32 s{sKch}, 9', f's_cselect_b32 s{sKch}, 0, s{sKch}',
                f's_lshl_b32 s{sXoff}, s{sKch}, 7', f's_lshl_b32 s{sWoff}, s{sKch}, 19']

    def qdma(self, tag, base=None, half=None):
        b = sBase if base is None else base
        fl = self.c.qflags
        o = []
        xs = range(8) if half is None else (range(6) if half == 0 else range(6, 8))
        cur = None
        for i in xs:
            if cur != i >> 2:
                cur = i >> 2
                if cur == 0: o.append(f's_add_u32 m0, s{b}, s{sXL}')
                elif i == 4: o.append('s_add_u32 m0, m0, 4096')
                else:
                    o.append(f's_add_u32 s{sT0}, s{b}, s{sXL}'); o.append(f's_add_u32 m0, s{sT0}, 4096')
                o.append('s_nop 0')
            o.append(f'buffer_load_dwordx4 v{vXd+i}, {sr(sX,4)}, s{sXoff} offen offset:{1024*(i&3)} {fl} lds ;@{tag}')
        if half != 0:
            o.append(f's_add_u32 m0, s{b}, s{sWL}')
            o.append('s_nop 0')
            for i in range(4): o.append(f'buffer_load_dwordx4 v{vWd+i}, {sr(sWQ,4)}, s{sWoff} offen offset:{1024*i} {fl} lds ;@{tag}')
        return o

    def setup_early(self):
        e = self.e
        L, Q, G, C_, R, T0, T1, T2 = self.lanevars
        e(f'''v_lshrrev_b32 v{T0}, 1, v{Q}
v_lshlrev_b32 v{T1}, 7, v{Q}
s_add_u32 s{sT0}, s{sXL}, {LDS_Q0}
v_add_u32 v{T1}, s{sT0}, v{T1}''')
        for ks in range(2):
            e(f'v_add_u32 v{T2}, {4*ks}, v{G}\nv_xor_b32 v{T2}, v{T2}, v{T0}\nv_lshl_add_u32 v{vXr+ks}, v{T2}, 4, v{T1}')
        e(f'''v_lshl_add_u32 v{T0}, v{G}, 3, v{R}
v_lshlrev_b32 v{T1}, 8, v{T0}
v_and_b32 v{T2}, 1, v{C_}
v_lshl_add_u32 v{T1}, v{T2}, 3, v{T1}
v_add_u32 v{T1}, {LDS_Q0+32768}, v{T1}
v_and_b32 v{T0}, 1, v{G}
v_lshl_add_u32 v{T0}, v{T0}, 2, v{R}
v_lshlrev_b32 v{T0}, 1, v{T0}
v_lshrrev_b32 v{T2}, 1, v{C_}
v_xor_b32 v{T0}, v{T0}, v{T2}''')
        for tau in range(8):
            e(f'v_xor_b32 v{T2}, {2*tau}, v{T0}\nv_lshl_add_u32 v{vWr+tau}, v{T2}, 4, v{T1}')

    def kv0(self):
        if not self.c.krot: return f's_mov_b32 s{sKVo}, s{sKVl}'
        return f's_mul_i32 s{sKVo}, s2, {self.c.krot}\ns_and_b32 s{sKVo}, s{sKVo}, 31\ns_lshl_b32 s{sKVo}, s{sKVo}, 13\ns_add_u32 s{sKVo}, s{sKVo}, s{sKVl}'
    def deferred_kv(self):
        L, Q, G, C_, R, T0, T1, T2 = self.lanevars
        o = []
        def e(t): o.extend(x for x in t.split('\n') if x.strip())
        e(f'v_and_b32 v{T0}, 7, v{Q}\nv_lshlrev_b32 v{T0}, 1, v{T0}\nv_lshlrev_b32 v{T1}, 8, v{Q}')
        for t in range(4):
            e(f'v_add_u32 v{T2}, {4*t}, v{G}\nv_xor_b32 v{T2}, v{T2}, v{T0}\nv_lshl_add_u32 v{vKr+t}, v{T2}, 4, v{T1}')
        e(f'''v_lshl_add_u32 v{T0}, v{G}, 2, v{R}
v_lshlrev_b32 v{T1}, 8, v{T0}
v_and_b32 v{T0}, 7, v{T0}
v_lshlrev_b32 v{T0}, 1, v{T0}
v_and_b32 v{T2}, 1, v{C_}
v_lshl_add_u32 v{T1}, v{T2}, 3, v{T1}
v_lshrrev_b32 v{T2}, 1, v{C_}
v_xor_b32 v{T0}, v{T0}, v{T2}''')
        for tau in range(8):
            e(f'v_xor_b32 v{T2}, {2*tau}, v{T0}\nv_lshl_add_u32 v{vVr+tau}, v{T2}, 4, v{T1}')
        e(f'v_lshlrev_b32 v{T1}, 8, v{G}')
        for p_ in range(2):
            e(f'v_add_u32 v{T2}, {4*p_}, v{G}\nv_lshlrev_b32 v{T2}, 1, v{T2}\nv_xor_b32 v{T2}, v{T2}, v{Q}\nv_lshl_add_u32 v{vKVd+p_}, v{T2}, 4, v{T1}')
        e(f'v_mov_b32 v{T0}, 0x3f803f80')
        for i in range(4): e(f'v_accvgpr_write_b32 a{aONE+i}, v{T0}')
        e(f'''s_lshl_b32 s0, s{sB_}, 5
s_add_u32 s0, s0, s{sH}
s_lshl_b32 s0, s0, 18
s_add_u32 s{sK}, s6, s0
s_addc_u32 s{sK+1}, s7, 0
s_mov_b32 s{sK+2}, 262144
s_mov_b32 s{sK+3}, 0x20000
s_add_u32 s{sV}, s8, s0
s_addc_u32 s{sV+1}, s9, 0
s_mov_b32 s{sV+2}, 262144
s_mov_b32 s{sV+3}, 0x20000
s_lshl_b32 s{sKVl}, s{sW}, 11
{self.kv0()}
s_mov_b32 s{sScale}, {f32bits(SCALE):#x}
s_mov_b32 s{sScale+1}, {f32bits(SCALE):#x}''')
        return o

    def deferred_wo(self):
        L, Q, G, C_, R, T0, T1, T2 = self.lanevars
        o = []
        def e(t): o.extend(x for x in t.split('\n') if x.strip())
        for i in range(9):
            e(f'''v_add_u32 v{T0}, {64*i}, v{L}
v_mul_u32_u24 v{T1}, 3641, v{T0}
v_lshrrev_b32 v{T1}, 16, v{T1}
v_mul_u32_u24 v{T2}, 18, v{T1}
v_sub_u32 v{T2}, v{T0}, v{T2}
v_mul_u32_u24 v{T1}, 1152, v{T1}
v_lshl_add_u32 v{T1}, v{T2}, 4, v{T1}
v_subrev_u32 v{vWOd+i}, {1024*(i%3)}, v{T1}''')
        e(f'v_lshl_add_u32 v{T0}, v{G}, 2, v{R}\nv_mul_u32_u24 v{T0}, 288, v{T0}\nv_lshl_add_u32 v{vWOr}, v{C_}, 3, v{T0}')
        e(f'''s_mov_b32 s{sWO}, s12
s_mov_b32 s{sWO+1}, s13
s_mov_b32 s{sWO+2}, 4718592
s_mov_b32 s{sWO+3}, 0x20000
s_lshl_b32 s0, s{sB_}, 21
s_add_u32 s{sOW}, s18, s0
s_addc_u32 s{sOW+1}, s19, 0
s_mov_b32 s{sOW+2}, 0x200000
s_mov_b32 s{sOW+3}, 0x20000
s_lshl_b32 s0, s{sB_}, 3
s_lshl_b32 s1, s{sMH}, 2
s_add_u32 s0, s0, s1
s_add_u32 s0, s0, s{sNQ}
s_mul_i32 s0, s0, {PGRP}
s_add_u32 s0, s0, {OFF_P}
s_add_u32 s{sPT}, s18, s0
s_addc_u32 s{sPT+1}, s19, 0
s_mov_b32 s{sPT+2}, {PGRP}
s_mov_b32 s{sPT+3}, 0x20000
s_mul_i32 s0, s{sB_}, 294912
s_add_u32 s{sOUT}, s14, s0
s_addc_u32 s{sOUT+1}, s15, 0
s_mov_b32 s{sOUT+2}, 294912
s_mov_b32 s{sOUT+3}, 0x20000
s_lshl_b32 s0, s{sW}, 5
s_lshl_b32 s1, s{sHG}, 10
s_add_u32 s0, s0, s1
s_mul_i32 s0, s0, 1152
s_mul_i32 s1, s{sNQ}, 288
s_add_u32 s{sWOo}, s0, s1''')
        if self.c.mapping == 'A': e(f's_mov_b32 s{sRot}, 0')
        else: e(f's_and_b32 s{sRot}, s{sB_}, 3\ns_lshl_b32 s{sRot}, s{sRot}, 1')
        e(f's_mov_b32 s{sRedo}, 0')
        return o

    def defer(self, g, lst, lo, hi):
        gi = lo; cnt = 0; lastv = False
        i = 0
        while i < len(lst):
            x = lst[i]; isv = x.startswith('v_')
            grp = [x]
            if x.startswith('s_add_u32') and i + 1 < len(lst) and lst[i+1].startswith('s_addc'): grp.append(lst[i+1])
            if cnt >= 2 or (not isv and lastv): gi += 1; cnt = 0; lastv = False
            assert gi <= hi, (gi, hi, len(lst) - i)
            g.setdefault(gi, []).extend(grp)
            cnt += len(grp); lastv = lastv or isv
            i += len(grp)
        return gi

    def q_reads(self, ks, aX, aW):
        xs = [f'ds_read_b128 {ar(aX+4*qb,4)}, v{vXr+ks} offset:{qb*2048}' for qb in range(4)]
        ws_ = [f'ds_read_b64_tr_b16 {ar(aW+4*tau+2*jj,2)}, v{vWr+tau} offset:{ks*8192+jj*1024}' for tau in range(8) for jj in range(2)]
        return [xs[0], ws_[0], ws_[1]] + xs[1:] + ws_[2:]
    def q_mfmas(self, aX, aW, first=False):
        m = []
        for tau in range(8):
            for qb in range(4):
                d = vr(acc(qb, tau), 4)
                m.append(f'v_mfma_f32_16x16x32_bf16 {d}, {ar(aW+4*tau,4)}, {ar(aX+4*qb,4)}, {"0" if first else d}')
        return m
    def kv_dma(self, stage, doK=True, doV=True):
        slot = (stage % 4) * 16384
        nt = ' nt' if self.c.nt else ''
        tag = f'st{stage % 4}'
        o = []
        if doK:
            o.append(f's_add_u32 m0, s{sKVl}, {slot}'); o.append('s_nop 0')
            for p_ in range(2): o.append(f'buffer_load_dwordx4 v{vKVd+p_}, {sr(sK,4)}, s{sKVo} offen offset:{1024*p_}{nt} lds ;@{tag}')
        if doV:
            o.append(f's_add_u32 m0, s{sKVl}, {slot+8192}'); o.append('s_nop 0')
            for p_ in range(2): o.append(f'buffer_load_dwordx4 v{vKVd+p_}, {sr(sV,4)}, s{sVo} offen offset:{1024*p_}{nt} lds ;@{tag}')
        o.append(f's_mov_b32 s{sVo}, s{sKVo}')
        o.append(f's_add_u32 s{sKVo}, s{sKVo}, 8192')
        if self.c.krot: o.append(f's_and_b32 s{sKVo}, s{sKVo}, 0x3ffff')
        return o
    def kv_one(self, stage, which):
        slot = (stage % 4) * 16384
        nt = ' nt' if self.c.nt else ''
        isV = which >= 2; p_ = which & 1
        srd = sV if isV else sK; so = sVo if isV else sKVo
        return [f's_add_u32 m0, s{sKVl}, {slot + (8192 if isV else 0)}',
                f'buffer_load_dwordx4 v{vKVd+p_}, {sr(srd,4)}, s{so} offen offset:{1024*p_}{nt} lds ;@st{stage % 4}']
    def wo_one(self, i, tag):
        return [f's_add_u32 m0, s{sWOm}, {3072*(i//3)}',
                f'buffer_load_dwordx4 v{vWOd+i}, {sr(sWO,4)}, s{sWOs} offen offset:{1024*(i%3)} {self.c.wo_flags} lds ;@{tag}']
    def k_reads(self, tile):
        slot = (tile % 4) * 16384
        return {(u, t): f'ds_read_b128 {ar(aK+(u*4+t)*4,4)}, v{vKr+t} offset:{slot+4096*u}' for u in range(2) for t in range(4)}
    def v_reads(self, tile):
        slot = ((tile+1) % 4) * 16384 + 8192
        return {(tau, jj): f'ds_read_b64_tr_b16 {ar(aV+tau*4+2*jj,2)}, v{vVr+tau} offset:{slot+4096*jj}' for tau in range(8) for jj in range(2)}

    def q_chunk(self, c, first=False, p1=None, p2=None, wait_tag=None, last=False, d1=None, d2=None):
        e = self.e
        e('s_waitcnt lgkmcnt(0)')
        g = {}
        qp = self.c.qp
        for i, r in enumerate(self.q_reads(1, aXB, aWB)): g.setdefault(i // 2 if qp == 3 else i, []).append(r)
        if p1:
            nl = sum(1 for x in p1 if x.startswith('buffer_load'))
            pl = [x for x in p1 if x != 's_nop 0']
            if nl <= 6:
                if qp == 1: self.spread(g, pl, 19, 2, 31)
                elif qp == 2: self.spread(g, pl, 18, 2, 31)
                elif qp == 3: self.spread(g, pl, 11, 3, 31)
                elif qp == 4: self.spread(g, pl, 1, 5, 31)
                elif qp == 5: self.spread(g, pl, 20, 1, 31)
            else: self.spread(g, pl, 1, len_step(p1, 30), 31)
        if d1: self.defer(g, d1, 0, 31)
        g = self.qabl(g)
        self.stream(self.q_mfmas(aXA, aWA, first=first), g)
        self.vmwait(wait_tag, ' lgkmcnt(0)')
        if 'B' not in self.c.abl: e('s_barrier')
        g = {}
        if not last:
            for x in [f's_mov_b32 s{sDelta}, 49152', f's_cmp_eq_u32 s{sBase}, {LDS_Q0+2*49152}', f's_cselect_b32 s{sDelta}, {(-98304) & 0xffffffff:#x}, s{sDelta}']: e(x)
            upd = [f'v_add_u32 v{r}, s{sDelta}, v{r}' for r in list(range(vXr, vXr+2)) + list(range(vWr, vWr+8))]
            for i, u in enumerate(upd): g.setdefault(i//2, []).append(u)
            for i, r in enumerate(self.q_reads(0, aXA, aWA)): g.setdefault(5 + (i // 2 if qp == 3 else i), []).append(r)
            g.setdefault(0, []).insert(0, f's_mov_b32 s{sPB}, s{sBase}')
            g.setdefault(0, []).insert(1, f's_add_u32 s{sBase}, s{sBase}, s{sDelta}')
        else:
            for i, r in enumerate(self.k_reads(0).values()): g.setdefault(2 + i, []).append(r)
        if p2:
            nl = sum(1 for x in p2 if x.startswith('buffer_load'))
            pl = [x for x in p2 if x != 's_nop 0']
            if nl <= 6 and qp == 2:
                k = [i for i, x in enumerate(pl) if x.startswith('buffer_load')]
                self.spread(g, pl[:k[1]+1], 0, 2, 4); self.spread(g, pl[k[1]+1:], 22, 2, 31)
            elif nl <= 6 and qp == 3: self.spread(g, pl, 15, 2, 31)
            elif nl <= 6 and qp == 5: self.spread(g, pl, 22, 1, 31)
            else: self.spread(g, pl, 1, len_step(p2, 30), 31)
        if d2: self.defer(g, d2, 6, 31)
        g = self.qabl(g)
        self.stream(self.q_mfmas(aXB, aWB), g)

    def qabl(self, g):
        ab = self.c.abl
        out = {}
        for k, v in g.items():
            out[k] = [x for x in v if not (('D' in ab and x.startswith('buffer_load')) or ('R' in ab and x.startswith('ds_read')))]
        return out
    def q_phase(self):
        e = self.e
        self.vmwait('q0')
        e('s_barrier')
        self.stamp()
        e(f's_mov_b32 s{sBase}, {LDS_Q0}')
        for r in self.q_reads(0, aXA, aWA): e(r)
        e(f's_mov_b32 s{sPB}, {LDS_Q0+2*49152}')
        dk = self.deferred_kv(); dw = self.deferred_wo()
        self.q_chunk(0, first=True, p1=self.qdma('qa', base=sPB) + self.advance_kch(), p2=self.qdma('qb', base=sPB, half=0), wait_tag='q1', d1=dk[:52], d2=dk[52:])
        e(f's_mov_b32 s{sCnt}, 5')
        e('.p2align 4')
        self.p.label('L_q')
        self.q_chunk(1, p1=self.qdma('qb', base=sPB, half=1) + self.advance_kch(), p2=self.qdma('qc', base=sPB, half=0), wait_tag='@Q')
        e(f's_sub_u32 s{sCnt}, s{sCnt}, 1\ns_cmp_lg_u32 s{sCnt}, 0\ns_cbranch_scc1 L_q')
        self.q_chunk(6, p1=self.qdma('q8', base=sPB, half=1), p2=self.kv_dma(0, doV=False) + self.kv_dma(1), wait_tag='@Q6', d1=dw[:56], d2=dw[56:75])
        self.q_chunk(7, p1=self.kv_dma(2), p2=self.kv_dma(3), wait_tag='q8', d1=dw[75:])
        self.q_chunk(8, wait_tag='st0', last=True)
        self.stamp()
        e('s_nop 7')
        slots = []
        if self.c.wotouch:
            e(f's_mul_i32 s{sT2}, s2, 18432\ns_mul_i32 s{sT3}, s{sW}, 4608\ns_add_u32 s{sT2}, s{sT2}, s{sT3}')
            e(f'v_lshrrev_b32 v209, 4, v{vL16}\nv_min_u32 v209, 35, v209\nv_lshlrev_b32 v209, 7, v209')
            e(f'buffer_load_dword v210, v209, {sr(sWO,4)}, s{sT2} offen ;@wt')
        if self.c.outtouch:
            e(f'''s_and_b32 s{sT0}, s{sHG}, 1
s_lshl_b32 s{sT0}, s{sT0}, 4
s_lshl_b32 s{sT1}, s{sW}, 6
s_add_u32 s{sT0}, s{sT0}, s{sT1}
s_lshl_b32 s{sT1}, s{sMH}, 5
s_add_u32 s{sT0}, s{sT0}, s{sT1}
s_mul_i32 s{sT0}, s{sT0}, 1152
s_mul_i32 s{sT1}, s{sNQ}, 288
s_add_u32 s{sT0}, s{sT0}, s{sT1}
s_lshr_b32 s{sT1}, s{sHG}, 1
s_mul_i32 s{sT1}, s{sT1}, 160
s_add_u32 s{sT0}, s{sT0}, s{sT1}
v_bfe_u32 v215, v{vL16}, 4, 4
v_mul_u32_u24 v215, 1152, v215
v_lshrrev_b32 v216, 8, v{vL16}
v_min_u32 v216, 2, v216
v_lshl_add_u32 v215, v216, 6, v215
buffer_load_dword v216, v215, {sr(sOUT,4)}, s{sT0} offen ;@ot''')
        if self.c.wotouch >= 2:
            F = vPK + 16 + 4
            e(f'''s_lshl_b32 s{sT0}, s{sB_}, 5
s_lshl_b32 s{sT1}, s{sHG}, 3
s_add_u32 s{sT0}, s{sT0}, s{sT1}
s_lshl_b32 s{sT0}, s{sT0}, 2
s_add_u32 s{sT0}, s{sT0}, s{sW}
s_lshl_b32 s{sT0}, s{sT0}, 7
s_add_u32 s{sT0}, s{sT0}, {FLG_O}
v_bfe_u32 v211, v{vL16}, 4, 3
v_lshlrev_b32 v211, 9, v211
v_add_u32 v211, s{sT0}, v211
global_load_dword v212, v211, s[18:19] sc1 ;@ft
s_lshl_b32 s{sT0}, s{sB_}, 1
s_add_u32 s{sT0}, s{sT0}, s{sMH}
s_lshl_b32 s{sT0}, s{sT0}, 2
s_add_u32 s{sT0}, s{sT0}, s{sNQ}
s_lshl_b32 s{sT0}, s{sT0}, 4
s_add_u32 s{sT0}, s{sT0}, s{sW}
s_lshl_b32 s{sT0}, s{sT0}, 7
s_add_u32 s{sT0}, s{sT0}, {FLG_P}
v_bfe_u32 v213, v{vL16}, 4, 2
v_lshlrev_b32 v213, 9, v213
v_add_u32 v213, s{sT0}, v213
global_load_dword v214, v213, s[18:19] sc1 ;@ft''')
            self.flag_touch = True
        it = iter(slots)
        for t in range(4):
            for qb in range(4):
                grp = next(it, [])
                for x in grp[:-1]: e(x)
                pend_load = grp[-1:]
                X = acc(qb, 2*t); Y = acc(qb, 2*t+1)
                for r in (X, X+2, Y, Y+2):
                    e(f'v_pk_mul_f32 {vr(r,2)}, {vr(r,2)}, {sr(sScale,2)}')
                for x in pend_load: e(x)
                T = vT + 4*(qb % 2)
                e(f'v_cvt_pk_bf16_f32 v{T}, v{X}, v{X+1}')
                e(f'v_cvt_pk_bf16_f32 v{T+1}, v{X+2}, v{X+3}')
                e(f'v_cvt_pk_bf16_f32 v{T+2}, v{Y}, v{Y+1}')
                e(f'v_cvt_pk_bf16_f32 v{T+3}, v{Y+2}, v{Y+3}')
                e('s_nop 0')
                e(f'v_permlane32_swap_b32 v{T}, v{T+2}')
                e(f'v_permlane32_swap_b32 v{T+1}, v{T+3}')
                e('s_nop 0')
                e(f'v_permlane16_swap_b32 v{T}, v{T+2}')
                e(f'v_permlane16_swap_b32 v{T+1}, v{T+3}')
                for i in range(4): e(f'v_accvgpr_write_b32 a{aQ+(qb*4+t)*4+i}, v{T+i}')
        for grp in it:
            for x in grp[:-1]: e(x)
            e('s_nop 0'); e(grp[-1])

    def wo_warm(self):
        e = []
        if self.c.mapping == 'A':
            e += [f's_add_u32 s{sT2}, s{sHH}, 4']
        else:
            e += [f's_and_b32 s{sT2}, s{sB_}, 3', f's_lshl_b32 s{sT2}, s{sT2}, 1', f's_add_u32 s{sT2}, s{sT2}, s{sMH}']
        e += [f's_and_b32 s{sT2}, s{sT2}, 7', f's_mul_i32 s{sT2}, s{sT2}, {128*1152}', f's_add_u32 s{sWOs}, s{sT2}, s{sWOo}', f's_mov_b32 s{sWOm}, {DUMMY_LDS}']
        for k in range(3):
            l = self.wo_loads3(k, 'warm')
            e += [l[0], 's_nop 0'] + l[1:]
        return e

    def qk_order(self):
        return [(u, t) for t in range(4) for u in range(2)] if self.c.qi else [(u, t) for u in range(2) for t in range(4)]
    def qk_mfmas(self, qb, sbuf, cinit):
        m = []
        for u, t in self.qk_order():
            d = vr(sbuf + 4*u, 4)
            m.append(f'v_mfma_f32_16x16x32_bf16 {d}, {ar(aK+(u*4+t)*4,4)}, {ar(aQ+(qb*4+t)*4,4)}, {cinit if t == 0 else d}')
        return m
    def pv_mfmas(self, qb, pbuf, first):
        m = []
        for tau in range(8):
            d = vr(acc(qb, tau), 4)
            m.append(f'v_mfma_f32_16x16x32_bf16 {d}, {ar(aV+tau*4,4)}, {vr(pbuf,4)}, {"0" if first else d}')
        if self.c.lsum == 'ones':
            d = vr(LAC + 4*qb, 4)
            m.append(f'v_mfma_f32_16x16x32_bf16 {d}, {ar(aONE,4)}, {vr(pbuf,4)}, {"0" if first else d}')
        return m
    def wo_loads3(self, k, tag):
        o = [f's_add_u32 m0, s{sWOm}, {3072*k}']
        for i in range(3*k, 3*k+3):
            o.append(f'buffer_load_dwordx4 v{vWOd+i}, {sr(sWO,4)}, s{sWOs} offen offset:{1024*(i%3)} {self.c.wo_flags} lds ;@{tag}')
        return o
    def head_of(self, gam):
        if gam == 0: return [f's_mov_b32 s{sT2}, s{sHH}']
        return [f's_add_u32 s{sT2}, s{sRot}, {gam-1}', f's_sub_u32 s{sT3}, s{sT2}, 7', f's_cmp_ge_u32 s{sT2}, 7', f's_cselect_b32 s{sT2}, s{sT3}, s{sT2}',
                f's_add_u32 s{sT2}, s{sT2}, s{sHH}', f's_add_u32 s{sT2}, s{sT2}, 1', f's_and_b32 s{sT2}, s{sT2}, 7']
    def wo_setup(self, gam):
        return self.head_of(gam) + [f's_mul_i32 s{sT2}, s{sT2}, {128*1152}',
                f's_add_u32 s{sWOs}, s{sT2}, s{sWOo}', f's_mul_i32 s{sT3}, s{sW}, 9216', f's_add_u32 s{sWOm}, s{sT3}, {G_BASE[gam % 4]}']
    def wo_dma(self, gam):
        o = self.wo_setup(gam)
        for k in range(3):
            l = self.wo_loads3(k, f'wo{gam}')
            o += [l[0], 's_nop 0'] + l[1:]
        return o

    def unit(self, n, sm=True, pv=True, first_pv=False, skipv=False, wo1=None, pre=None, tail=False):
        e = self.e
        qb = n % 4; tile = n // 4
        if qb == 0:
            if tail and tile + 1 > 32: e('s_waitcnt lgkmcnt(0)')
            else: self.vmwait(f'st{(tile+1) % 4}', ' lgkmcnt(0)')
            e('s_barrier')
        mf = self.qk_mfmas(qb, SB + 8*(n % 2), vr(NM + 4*qb, 4)) if not (tail and n >= 128) else []
        if pv: mf += self.pv_mfmas((n-2) % 4, PB + 4*((n-2) % 2), first_pv)
        N = len(mf)
        g = {}
        def put(i, x): g.setdefault(min(i, N-1), []).append(x)
        if pre:
            for x in pre: put(0, x)
        NF = 17 if self.c.lsum == 'ones' else 16
        full = N >= NF
        if sm and not (tail and n - 1 > 127):
            s = SB + 8*((n-1) % 2); pb = PB + 4*((n-1) % 2)
            if full: eg = [0, 2, 4, 6, 8, 10, 12, 14]; cg = [3, 7, 11, 15]
            elif N == 9: eg = [0, 1, 2, 3, 4, 5, 6, 7]; cg = [2, 4, 6, 8]
            else: eg = [0, 1, 2, 3, 4, 5, 6, 6]; cg = [3, 5, 7, 7]
            for i in range(8): put(eg[i], f'v_exp_f32 v{s+i}, v{s+i}')
            for i in range(4): put(cg[i], f'v_cvt_pk_bf16_f32 v{pb+i}, v{s+2*i}, v{s+2*i+1}')
            lq = LAC + 4*((n-1) % 4)
            if self.c.lsum == 'add':
                ag = [1, 3, 5, 7, 9, 11, 13, 15] if full else [min(x+1, N-1) for x in eg]
                for i in range(8): put(ag[i], f'v_add_f32 v{lq + (i & 1)}, v{lq + (i & 1)}, v{s+i}')
            elif self.c.lsum == 'pk':
                ag = [5, 9, 13, 15] if full else [min(x+1, N-1) for x in cg]
                ag = [3, 7, 11, 15] if full else ag
                for i in range(4): put(ag[i], f'v_pk_add_f32 {vr(lq,2)}, {vr(lq,2)}, {vr(s+2*i,2)}')
        if not self.c.kvspread:
            if qb == 0 and not (tail and tile + 4 > 32):
                d = [x for x in self.kv_dma(tile + 4) if x != 's_nop 0']
                pos = [0, 1, 5, 8, 9, 13, N-1, N-1, N-1] if full else [0, 1, 2, 3, 4, 5, N-1, N-1, N-1]
                for x, gi in zip(d, pos): put(gi, x)
        elif not (tail and tile + 4 > 32):
            ld = self.kv_one(tile + 4, qb)
            gi = {0: 5, 1: 5, 2: 9, 3: 13}[qb] if N >= 17 else {0: 5, 1: 6, 2: 5, 3: 5}[qb]
            put(gi-1, ld[0]); put(gi, ld[1])
            if qb == 3:
                put(N-1, f's_mov_b32 s{sVo}, s{sKVo}'); put(N-1, f's_add_u32 s{sKVo}, s{sKVo}, 8192')
        if wo1 is not None:
            ld = self.wo_one(wo1, 'wop')
            gi = {0: 13, 1: 1, 2: 13, 3: 16}[qb] if self.c.kvspread else {0: 16, 1: 1, 2: 13, 3: 16}[qb]
            put(gi-1, ld[0]); put(gi, ld[1])
        if qb == 3 and not (tail and tile + 1 > 31):
            kr = self.k_reads(tile + 1)
            if self.c.qi: kp = {(0,0):1, (1,0):1, (0,1):3, (1,1):3, (0,2):5, (1,2):5, (0,3):7, (1,3):9}
            else: kp = {(0,0):1, (0,1):1, (0,2):3, (0,3):3, (1,0):5, (1,1):5, (1,2):7, (1,3):9}
            for k, gi in kp.items(): put(gi, kr[k])
        if qb in (1, 2) and pv and not skipv and not (tail and tile > 31):
            vrd = self.v_reads(tile)
            pl = {(0,0):9, (0,1):9, (1,0):11, (1,1):11, (2,0):13, (2,1):13, (3,0):15, (3,1):16, (4,0):16} if qb == 1 else \
                 {(4,1):1, (5,0):1, (5,1):3, (6,0):3, (6,1):5, (7,0):5, (7,1):7}
            for k, gi in pl.items(): put(gi, vrd[k])
        if tail and self.c.tailwo:
            plan = {118: (0, [0,1]), 119: (0, [2,3]), 120: (0, [4,5]), 121: (0, [6]), 122: (0, [7,8]), 123: (1, [0,1]),
                    124: (1, [2,3]), 125: (1, [4]), 126: (1, [5,6]), 127: (1, [7,8]), 128: (1, []), 129: (1, [])}
            free = {0: [1, 9, 13, 16], 1: [1, 5], 2: [9, 13, 16], 3: [11, 13, 16]}
            gam, idxs = plan[n]
            if idxs and idxs[0] == 0:
                for x in self.wo_setup(gam): put(0, x)
            fr = free[qb] if full else list(range(1, N))
            if full and tile + 4 > 32 and qb == 0: fr = [1, 5, 9, 13, 16]
            fr = [min(x, N-1) for x in fr]
            if n == 127: fr = [1, 5, 9, 13]
            if n == 123: fr = [11, 13, 16]
            for i, gi in zip(idxs, fr):
                ld = self.wo_one(i, f'wo{gam}')
                put(gi-1, ld[0]); put(gi, ld[1])
            assert len(idxs) <= len(fr), n
        abl = self.c.abl
        if abl and n >= 6:
            for k in list(g):
                keep = []
                for x in g[k]:
                    if 'd' in abl and x.startswith('buffer_load'): continue
                    if 'l' in abl and x.startswith('ds_read'): continue
                    if 'e' in abl and x.startswith('v_exp'): continue
                    if 'c' in abl and x.startswith('v_cvt'): continue
                    keep.append(x)
                g[k] = keep
            if 'o' in abl and pv: mf = mf[:-1]; g = {k: v for k, v in g.items() if k < len(mf)} if False else g;
            if 'o' in abl and pv:
                last = g.pop(16, [])
                g.setdefault(15, []).extend(last)
        self.stream(mf, g)

    def attn_prologue(self):
        e = self.e
        e('s_waitcnt lgkmcnt(0)')
        for qb in range(4):
            d = vr(SB + 4*qb, 4)
            for t in range(4):
                e(f'v_mfma_f32_16x16x32_bf16 {d}, {ar(aK+t*4,4)}, {ar(aQ+(qb*4+t)*4,4)}, {"0" if t == 0 else d}')
        e('s_nop 7')
        for qb in range(4):
            s = SB + 4*qb; T = vT + 2*qb
            e(f'v_max3_f32 v{T}, v{s}, v{s+1}, v{s+2}')
            e(f'v_max_f32 v{T}, v{T}, v{s+3}')
            e(f'v_mov_b32 v{T+1}, v{T}')
        e('s_nop 0')
        for qb in range(4): e(f'v_permlane32_swap_b32 v{vT+2*qb}, v{vT+2*qb+1}')
        for qb in range(4): e(f'v_max_f32 v{vT+2*qb}, v{vT+2*qb}, v{vT+2*qb+1}')
        for qb in range(4): e(f'v_mov_b32 v{vT+2*qb+1}, v{vT+2*qb}')
        e('s_nop 0')
        for qb in range(4): e(f'v_permlane16_swap_b32 v{vT+2*qb}, v{vT+2*qb+1}')
        for qb in range(4): e(f'v_max_f32 v{vT+2*qb}, v{vT+2*qb}, v{vT+2*qb+1}')
        for qb in range(4):
            for i in range(4): e(f'v_sub_f32 v{NM+4*qb+i}, 0, v{vT+2*qb}')
        e('s_nop 1')

    def attention(self):
        e = self.e
        self.attn_prologue()
        self.stamp()
        self.stamp('A')
        self.p.label('L_att_units')
        if self.c.lsum != 'ones':
            for qb in range(4): e(f'v_mov_b32 v{LAC+4*qb}, 0\nv_mov_b32 v{LAC+4*qb+1}, 0')
        self.unit(0, sm=False, pv=False)
        for r in self.v_reads(0).values(): e(r)
        self.unit(1, pv=False)
        e('s_waitcnt lgkmcnt(0)')
        if self.c.qi: e('s_nop 1')
        self.unit(2, first_pv=True, skipv=True)
        self.unit(3, first_pv=True)
        self.unit(4, first_pv=True)
        self.unit(5, first_pv=True)
        self.stamp('A')
        e(f's_mov_b32 s{sCnt}, 7')
        e('.p2align 4')
        self.p.label('L_att')
        if self.c.mapping == 'A': warm = [f's_add_u32 s{sT1}, s{sHH}, 4']
        else: warm = [f's_and_b32 s{sT1}, s{sB_}, 3', f's_lshl_b32 s{sT1}, s{sT1}, 1', f's_add_u32 s{sT1}, s{sT1}, s{sMH}']
        pre = [f's_sub_u32 s{sT0}, 7, s{sCnt}', f's_add_u32 s{sT2}, s{sHH}, s{sT0}'] + warm + [
               f's_cmp_eq_u32 s{sT0}, 2', f's_cselect_b32 s{sT2}, s{sT1}, s{sT2}',
               f's_and_b32 s{sT2}, s{sT2}, 7', f's_mul_i32 s{sT2}, s{sT2}, {128*1152}',
               f's_add_u32 s{sWOs}, s{sT2}, s{sWOo}', f's_mul_i32 s{sT3}, s{sT0}, 36864', f's_mul_i32 s{sT1}, s{sW}, 9216',
               f's_add_u32 s{sT3}, s{sT3}, s{sT1}', f's_add_u32 s{sWOm}, s{sT3}, {G_BASE[0]}',
               f's_cmp_lt_u32 s{sT0}, 2', f's_cselect_b32 s{sWOm}, s{sWOm}, {DUMMY_LDS}',
               f's_cmp_lt_u32 s{sT0}, {3 if self.c.warm_wo else 2}', f's_cselect_b32 s{sWOs}, s{sWOs}, 4718592']
        won = {7: 0, 8: 1, 10: 2, 11: 3, 12: 4, 14: 5, 16: 6, 18: 7, 20: 8}
        for n in range(6, 22):
            self.unit(n, pre=pre if (n == 6 and self.c.woloop) else None, wo1=won.get(n) if self.c.woloop else None)
        if self.c.stamps and self.c.stampset == 'A':
            for k in range(7, 0, -1):
                e(f's_cmp_lg_u32 s{sCnt}, {k}\ns_cbranch_scc1 L_ast{k}')
                self.stamp('A')
                self.p.label(f'L_ast{k}')
        e(f's_sub_u32 s{sCnt}, s{sCnt}, 1\ns_cmp_lg_u32 s{sCnt}, 0\ns_cbranch_scc1 L_att')
        e(f's_lshl_b32 s{sT0}, s{sB_}, 3\nv_mov_b32 v{vNON-1}, s{sT0}')
        e(f'global_load_dwordx2 {vr(vNON,2)}, v{vNON-1}, s[16:17] sc1 ;@non')
        for n in range(118, 130):
            self.unit(n, tail=True)
            if n == 128: e('s_nop 1')
            if n == 127:
                e(f's_lshl_b32 s{sT0}, s{sH}, 16\ns_lshl_b32 s{sT1}, s{sW}, 14\ns_add_u32 s{sOo}, s{sT0}, s{sT1}')
                self.norm_store(0)
            if n == 128: self.norm_store(1)
        self.stamp('A')

    def poll(self, name, nl, vaddr):
        e = self.e
        A, B = vT+10, vT+12
        def chk(r):
            return f'''v_cmp_eq_u32 vcc, v{r}, v{vNON}
v_cmp_eq_u32 s[{sT0}:{sT1}], v{r+1}, v{vNON+1}
s_and_b64 vcc, vcc, s[{sT0}:{sT1}]
s_cmp_eq_u32 vcc_lo, {(1 << nl) - 1}
s_cbranch_scc1 L_{name}_ok'''
        e(f's_mov_b32 s{sT2}, 0')
        if self.c.psleep:
            self.p.label(f'L_{name}_poll')
            e(f'global_load_dwordx2 {vr(A,2)}, v{vaddr}, s[18:19] sc1 ;@x')
            e('s_waitcnt vmcnt(0)')
            e(chk(A))
            e(f's_sleep {self.c.psleep}')
            e(f's_add_u32 s{sT2}, s{sT2}, 1\ns_cmp_lt_u32 s{sT2}, 0x40000\ns_cbranch_scc1 L_{name}_poll')
        else:
            e(f'global_load_dwordx2 {vr(A,2)}, v{vaddr}, s[18:19] sc1 ;@x')
            self.p.label(f'L_{name}_poll')
            e(f'global_load_dwordx2 {vr(B,2)}, v{vaddr}, s[18:19] sc1 ;@x')
            e('s_waitcnt vmcnt(1)')
            e(chk(A))
            e(f'global_load_dwordx2 {vr(A,2)}, v{vaddr}, s[18:19] sc1 ;@x')
            e('s_waitcnt vmcnt(1)')
            e(chk(B))
            e(f's_add_u32 s{sT2}, s{sT2}, 1\ns_cmp_lt_u32 s{sT2}, 0x40000\ns_cbranch_scc1 L_{name}_poll')
        self.p.label(f'L_{name}_ok')

    def norm_store(self, qb):
        e = self.e
        R = vT + 4
        if self.c.lsum != 'ones':
            l = LAC + 4*qb
            e(f'v_add_f32 v{l}, v{l}, v{l+1}\ns_nop 0\nv_mov_b32 v{l+1}, v{l}\ns_nop 1\nv_permlane32_swap_b32 v{l}, v{l+1}\ns_nop 0\nv_add_f32 v{l}, v{l}, v{l+1}')
            e(f's_nop 0\nv_mov_b32 v{l+1}, v{l}\ns_nop 1\nv_permlane16_swap_b32 v{l}, v{l+1}\ns_nop 0\nv_add_f32 v{l}, v{l}, v{l+1}')
        e(f'v_rcp_f32 v{R}, v{LAC+4*qb}')
        e('s_nop 0')
        e(f'v_mov_b32 v{R+1}, v{R}')
        for t in range(4):
            X = acc(qb, 2*t); Y = acc(qb, 2*t+1)
            for r in (X, X+2, Y, Y+2):
                e(f'v_pk_mul_f32 {vr(r,2)}, {vr(r,2)}, {vr(R,2)}')
            T = vPK + 4*t
            e(f'v_cvt_pk_bf16_f32 v{T}, v{X}, v{X+1}')
            e(f'v_cvt_pk_bf16_f32 v{T+1}, v{X+2}, v{X+3}')
            e(f'v_cvt_pk_bf16_f32 v{T+2}, v{Y}, v{Y+1}')
            e(f'v_cvt_pk_bf16_f32 v{T+3}, v{Y+2}, v{Y+3}')
            e(f's_add_u32 s{sT0}, s{sOo}, {(qb*4+t)*1024}')
            e(f'buffer_store_dwordx4 {vr(T,4)}, v{vL16}, {sr(sOW,4)}, s{sT0} offen {self.c.st_flags} ;@ost')
        e(f's_cmp_lg_u32 s{sMH}, {qb >> 1}\ns_cbranch_scc1 L_own_skip{qb}')
        for t in range(4):
            for i in range(4):
                e(f'v_accvgpr_write_b32 a{aOB + (t*2 + (qb & 1))*4 + i}, v{vPK+4*t+i}')
        self.p.label(f'L_own_skip{qb}')

    def publish_o(self):
        e = self.e
        e('s_nop 4')
        self.norm_store(2)
        if self.c.lsum != 'ones': self.norm_store(3)
        e(f'v_mov_b32 v{vT+6}, {LIMIT:#x}')
        e(f'v_cmp_nge_f32 vcc, v{vT+6}, v{LAC}')
        for qb in range(1, 4):
            e(f'v_cmp_nge_f32 s[{sT0}:{sT1}], v{vT+6}, v{LAC+4*qb}')
            e(f's_or_b64 vcc, vcc, s[{sT0}:{sT1}]')
        e(f'''s_cmp_lg_u64 vcc, 0
s_cselect_b32 s{sT2}, 1, 0
s_cmp_eq_u32 s{sRedo}, 0
s_cselect_b32 s{sT2}, s{sT2}, 0
v_mov_b32 v{vT+6}, s{sT2}
s_lshl_b32 s{sT0}, s{sW}, 2
s_add_u32 s{sT0}, s{sT0}, {LDS_FLAG}
v_mov_b32 v{vT+7}, s{sT0}
ds_write_b32 v{vT+7}, v{vT+6}''')
        if self.c.lsum == 'ones': self.norm_store(3)
        e(f'''s_lshl_b32 s{sT0}, s{sB_}, 5
s_add_u32 s{sT1}, s{sT0}, s{sH}
s_lshl_b32 s{sT1}, s{sT1}, 2
s_add_u32 s{sT1}, s{sT1}, s{sW}
s_lshl_b32 s{sT1}, s{sT1}, 7
s_add_u32 s{sT1}, s{sT1}, {FLG_O}
v_mov_b32 v{vT}, s{sT1}
s_lshl_b32 s{sT1}, s{sHG}, 3
s_add_u32 s{sT0}, s{sT0}, s{sT1}
s_lshl_b32 s{sT0}, s{sT0}, 2
s_add_u32 s{sT0}, s{sT0}, s{sW}
s_lshl_b32 s{sT0}, s{sT0}, 7
s_add_u32 s{sT0}, s{sT0}, {FLG_O}
v_lshlrev_b32 v{vT+1}, 5, v{vL16}
v_add_u32 v{vT+1}, s{sT0}, v{vT+1}''')
        self.stamp()

    def o_sync(self):
        e = self.e
        for gam in range(1, 8):
            for x in self.head_of(gam): e(x)
            e(f's_lshl_b32 s{sT3}, s{sHG}, 3\ns_add_u32 s{sT3}, s{sT2}, s{sT3}\ns_lshl_b32 s{sT3}, s{sT3}, 16\ns_add_u32 s{sOS+gam}, s{sT3}, s{sOo}')
            if gam >= 4:
                e(f's_mul_i32 s{sT2}, s{sT2}, {128*1152}\ns_add_u32 s{sWS+gam-4}, s{sT2}, s{sWOo}')
        e(f's_mul_i32 s{sWOm}, s{sW}, 9216')
        e(f's_lshl_b32 s{sT0}, s{sHG}, 2\ns_add_u32 s{sT0}, s{sT0}, s{sW}\ns_mul_i32 s{sT0}, s{sT0}, 18432\ns_mov_b32 s{sT1}, 0x10000000')
        for own in range(4):
            e(f's_cmp_eq_u32 s{sHG}, {own}\ns_cselect_b32 s{sSend+own}, s{sT1}, s{sT0}')
        self.vmwait('ost')
        e(f's_mov_b32 s{sT2}, 0')
        self.p.label('L_non')
        e(f'v_or_b32 v{vT+10}, v{vNON}, v{vNON+1}\nv_cmp_ne_u32 vcc, 0, v{vT+10}\ns_cmp_lg_u64 vcc, 0\ns_cbranch_scc1 L_non_ok')
        e(f'global_load_dwordx2 {vr(vNON,2)}, v{vNON-1}, s[16:17] sc1 ;@x\ns_waitcnt vmcnt(0)\ns_add_u32 s{sT2}, s{sT2}, 1\ns_cmp_lt_u32 s{sT2}, 0x40000\ns_cbranch_scc1 L_non')
        self.p.label('L_non_ok')
        self.stamp()
        e('s_mov_b64 exec, 1')
        e(f'global_store_dwordx2 v{vT}, {vr(vNON,2)}, s[18:19] sc1 ;@x')
        e('s_mov_b64 exec, 0xff')
        self.poll('o', 8, vT+1)
        e('s_mov_b64 exec, -1')
        self.stamp()

    def o_load(self, gam, t, qx):
        r = aOB + ((gam % 4)*8 + t*2 + qx)*4
        va = vL16 if qx == 0 else vT+2
        return f'buffer_load_dwordx4 {ar(r,4)}, v{va}, {sr(sOW,4)}, s{sOS+gam} offen offset:{t*1024} {self.c.ld_flags} ;@o{gam}t{t}'
    def w_load(self, gam, i):
        return [f's_add_u32 m0, s{sWOm}, {G_BASE[gam % 4] + 3072*(i//3)}',
                f'buffer_load_dwordx4 v{vWOd+i}, {sr(sWO,4)}, s{sWS+gam-4} offen offset:{1024*(i%3)} {self.c.wo_flags} lds ;@wo{gam}']

    def ob_loads(self, gam):
        o = self.head_of(gam) + [f's_lshl_b32 s{sT3}, s{sHG}, 3',
             f's_add_u32 s{sT2}, s{sT2}, s{sT3}', f's_lshl_b32 s{sT2}, s{sT2}, 16', f's_add_u32 s{sT2}, s{sT2}, s{sOo}']
        for t in range(4):
            for qx in range(2):
                r = aOB + ((gam % 4)*8 + t*2 + qx)*4
                va = vL16 if qx == 0 else vT+2
                o.append(f'buffer_load_dwordx4 {ar(r,4)}, v{va}, {sr(sOW,4)}, s{sT2} offen offset:{t*1024} {self.c.ld_flags} ;@o{gam}')
        return o

    def o_phase(self):
        e = self.e
        e(f'''s_lshl_b32 s{sT0}, s{sW}, 14
s_lshl_b32 s{sT1}, s{sMH}, 13
s_add_u32 s{sOo}, s{sT0}, s{sT1}
v_add_u32 v{vT+2}, 4096, v{vL16}''')
        for k in range(4): e(f'v_add_u32 v{vT+4+k}, {G_BASE[k]}, v{vWOr}')
        def wbuf(gam, t): return 64 if (gam*4 + t) % 2 == 0 else 0
        def wreads(gam, t):
            a = vT + 4 + gam % 4
            return [f'ds_read_b64_tr_b16 {ar(wbuf(gam,t)+4*nu+2*jj,2)}, v{a} offset:{t*9216 + jj*4608 + nu*32}' for nu in range(9) for jj in range(2)]
        self.vmwait('wo0', ' lgkmcnt(0)')
        e('s_barrier')
        e(f'v_mov_b32 v{vT+8}, {LDS_FLAG}')
        e(f'ds_read_b128 {vr(vT+12,4)}, v{vT+8}')
        w0 = wreads(0, 0)
        for x in w0[:14]: e(x)
        e('s_waitcnt lgkmcnt(14)')
        e(f'v_or_b32 v{vT+12}, v{vT+12}, v{vT+13}\nv_or3_b32 v{vT+12}, v{vT+12}, v{vT+14}, v{vT+15}\ns_nop 0\nv_readfirstlane_b32 s{sT0}, v{vT+12}')
        for x in w0[14:]: e(x)
        e(f's_cmp_lg_u32 s{sT0}, 0\ns_cbranch_scc1 L_redo')
        Q = []
        def ol(gam, avail):
            for t in range(4):
                for qx in range(2): Q.append((avail, [self.o_load(gam, t, qx)]))
        def wl(gam, avail):
            for i in range(9): Q.append((avail, self.w_load(gam, i)))
        Q0 = []
        for gam in (2, 3):
            for i in range(9): Q0.append((gam, i))
        ol(2, (1,0)); ol(3, (1,0)); wl(4, (1,0)); ol(4, (1,0)); wl(5, (1,3)); ol(5, (2,0)); wl(6, (2,3)); ol(6, (3,0)); wl(7, (3,3)); ol(7, (4,0))
        if 'O' in self.c.abl: Q = [x for x in Q if len(x[1]) != 1]
        if 'W' in self.c.abl: Q = [x for x in Q if len(x[1]) == 1]
        def lastreads(nu):
            a = vT + 4 + 7 % 4
            base = 64 + 16*(nu % 2)
            return [f'ds_read_b64_tr_b16 {ar(base+4*t+2*jj,2)}, v{a} offset:{t*9216 + jj*4608 + nu*32}' for t in range(4) for jj in range(2)]
        for gam in range(7):
            if gam == 1:
                self.o_sync()
                self.stamp('O')
                for t in range(4):
                    for qx in range(2): e(self.o_load(1, t, qx))
            for t in range(4):
                if gam > 0:
                    self.vmwait(f'o{gam}t{t}')
                    if t == 0: self.stamp('O')
                if t == 3:
                    self.vmwait(f'wo{gam+1}', ' lgkmcnt(0)')
                    e('s_barrier')
                mf = []; g = {}
                nxt = (gam, t+1) if t < 3 else (gam+1, 0)
                for nu in range(9):
                    for qx in range(2):
                        d = vr(OACC + (nu*2+qx)*4, 4)
                        first = (gam == 0 and t == 0)
                        b = aOB + ((gam % 4)*8 + t*2 + qx)*4
                        mf.append(f'v_mfma_f32_16x16x32_bf16 {d}, {ar(wbuf(gam,t)+4*nu,4)}, {ar(b,4)}, {"0" if first else d}')
                rd = wreads(*nxt) if nxt != (7, 0) else lastreads(0)
                for i, x in enumerate(rd): g.setdefault(i//2, []).append(x)
                if gam == 0:
                    for gi in (9, 11, 13, 15, 17):
                        if Q0:
                            gg, i = Q0.pop(0)
                            pre = [x for x in self.wo_setup(gg)] if i == 0 else []
                            ld = self.wo_one(i, f'wo{gg}')
                            for x in pre: g.setdefault(gi-1, []).append(x)
                            g.setdefault(gi-1, []).append(ld[0]); g.setdefault(gi, []).append(ld[1])
                if gam >= 1:
                    for gi in (10, 12, 14, 16):
                        if Q and Q[0][0] <= (gam, t):
                            _, ld = Q.pop(0)
                            if len(ld) == 2: g.setdefault(gi-1, []).append(ld[0])
                            g.setdefault(gi, []).append(ld[-1])
                self.stream(mf, g)
        self.vmwait('o7t3')
        self.stamp('O')
        def send(nu, qx):
            own = qx + 2*(nu >= 5)
            return [f's_add_u32 s{sT0+qx}, s{sSend+own}, {(qx*9 + nu)*1024}',
                    f'buffer_store_dwordx4 {vr(OACC + (nu*2+qx)*4, 4)}, v{vL16}, {sr(sPT,4)}, s{sT0+qx} offen {self.c.st_flags} ;@pst']
        for nu in range(9):
            mf = []; g = {}
            for t in range(4):
                for qx in range(2):
                    d = vr(OACC + (nu*2+qx)*4, 4)
                    b = aOB + ((7 % 4)*8 + t*2 + qx)*4
                    mf.append(f'v_mfma_f32_16x16x32_bf16 {d}, {ar(64 + 16*(nu % 2) + 4*t, 4)}, {ar(b,4)}, {d}')
            if nu < 8:
                for i, x in enumerate(lastreads(nu+1)): g.setdefault(i//2, []).append(x)
            if nu > 0:
                for qx in range(2):
                    sx = send(nu-1, qx)
                    g.setdefault(4 + 2*qx, []).append(sx[0]); g.setdefault(5 + 2*qx, []).append(sx[1])
            self.stream(mf, g)
        e('s_nop 7')
        for qx in range(2):
            for x in send(8, qx): e(x)
        assert not Q, Q
        self.stamp('O')
        self.stamp()

    def final(self):
        e = self.e
        e(f'''s_lshl_b32 s{sT0}, s{sB_}, 1
s_add_u32 s{sT0}, s{sT0}, s{sMH}
s_lshl_b32 s{sT0}, s{sT0}, 2
s_add_u32 s{sT0}, s{sT0}, s{sNQ}
s_lshl_b32 s{sT0}, s{sT0}, 4
s_add_u32 s{sT0}, s{sT0}, s{sW}
s_lshl_b32 s{sT0}, s{sT0}, 7
s_add_u32 s{sT0}, s{sT0}, {FLG_P}
s_lshl_b32 s{sT1}, s{sHG}, 9
s_add_u32 s{sT1}, s{sT1}, s{sT0}
v_mov_b32 v{vT}, s{sT1}
v_lshlrev_b32 v{vT+1}, 5, v{vL16}
v_add_u32 v{vT+1}, s{sT0}, v{vT+1}''')
        T = vT + 8
        e(f'''v_bfe_u32 v{T}, v{vL16}, 4, 4
v_lshrrev_b32 v{T+1}, 8, v{vL16}
s_and_b32 s{sT0}, s{sHG}, 1
s_lshl_b32 s{sT3}, s{sW}, 6
s_lshl_b32 s{sCnt}, s{sMH}, 5
s_add_u32 s{sT3}, s{sT3}, s{sCnt}
s_lshl_b32 s{sCnt}, s{sT0}, 4
s_add_u32 s{sT3}, s{sT3}, s{sCnt}
v_add_u32 v{T}, s{sT3}, v{T}
v_mul_u32_u24 v{T}, 1152, v{T}
v_lshl_add_u32 v{T}, v{T+1}, 3, v{T}
s_mul_i32 s{sOo}, s{sW}, 18432
s_mul_i32 s{sWOs}, s{sNQ}, 288''')
        e('s_waitcnt vmcnt(0)')
        self.stamp()
        e('s_mov_b64 exec, 1')
        e(f'global_store_dwordx2 v{vT}, {vr(vNON,2)}, s[18:19] sc1')
        e('s_mov_b64 exec, -1')
        A = vT + 10
        for own in range(4):
            qx = own & 1; nus = list(range(5, 9) if own >> 1 else range(5))
            nxt = f'L_fin_v{own+1}' if own < 3 else None
            self.p.label(f'L_fin_v{own}')
            if nxt: e(f's_cmp_lg_u32 s{sHG}, {own}\ns_cbranch_scc1 {nxt}')
            srcs = [s_ for s_ in range(4) if s_ != own]
            e(f's_mov_b32 s{sCnt}, {1 << own}')
            e(f's_mov_b32 s{sT2}, 0')
            self.p.label(f'L_pp{own}')
            e('s_mov_b64 exec, 0xf')
            e(f'global_load_dwordx2 {vr(A,2)}, v{vT+1}, s[18:19] sc1')
            e('s_waitcnt vmcnt(0)')
            e(f'v_cmp_eq_u32 vcc, v{A}, v{vNON}\nv_cmp_eq_u32 s[{sT0}:{sT1}], v{A+1}, v{vNON+1}\ns_and_b64 vcc, vcc, s[{sT0}:{sT1}]')
            e('s_mov_b64 exec, -1')
            e(f's_andn2_b32 s{sT0}, vcc_lo, s{sCnt}')
            e(f's_or_b32 s{sCnt}, s{sCnt}, s{sT0}')
            for j, src in enumerate(srcs):
                e(f's_bitcmp1_b32 s{sT0}, {src}\ns_cbranch_scc0 L_pp{own}_{src}')
                for k, nu in enumerate(nus):
                    r = 80 + (j*5 + k)*4
                    e(f's_add_u32 s{sT3}, s{sOo}, {src*4*18432 + (qx*9+nu)*1024}')
                    e(f'buffer_load_dwordx4 {vr(r,4)}, v{vL16}, {sr(sPT,4)}, s{sT3} offen {self.c.ld_flags}')
                self.p.label(f'L_pp{own}_{src}')
            e(f's_add_u32 s{sT2}, s{sT2}, 1\ns_cmp_eq_u32 s{sCnt}, 15\ns_cbranch_scc1 L_ppd{own}')
            if self.c.psleep: e(f's_sleep {self.c.psleep}')
            e(f's_cmp_lt_u32 s{sT2}, 0x40000\ns_cbranch_scc1 L_pp{own}')
            self.p.label(f'L_ppd{own}')
            e('s_waitcnt vmcnt(0)')
            for k, nu in enumerate(nus):
                a = OACC + (nu*2+qx)*4
                for i in range(4):
                    e(f'v_add_f32 v{a+i}, v{a+i}, v{80+k*4+i}')
                    e(f'v_add_f32 v{100+k*4+i}, v{100+k*4+i}, v{120+k*4+i}')
                for i in range(4):
                    e(f'v_add_f32 v{a+i}, v{a+i}, v{100+k*4+i}')
                e(f'v_cvt_pk_bf16_f32 v{144+2*k}, v{a}, v{a+1}')
                e(f'v_cvt_pk_bf16_f32 v{144+2*k+1}, v{a+2}, v{a+3}')
                e(f'buffer_store_dwordx2 {vr(144+2*k,2)}, v{T}, {sr(sOUT,4)}, s{sWOs} offen offset:{32*nu} {self.c.out_flags}')
            if nxt: e('s_branch L_fin')

    def redo(self):
        e = self.e
        self.p.label('L_redo')
        e('s_waitcnt vmcnt(0) lgkmcnt(0)')
        e('s_barrier')
        M = vT + 8
        e(f'v_mov_b32 v{M+4}, 0x3f803f80')
        for i in range(4): e(f'v_accvgpr_write_b32 a{aONE+i}, v{M+4}')
        for qb in range(4): e(f'v_mov_b32 v{M+qb}, 0xff800000')
        e(f's_mov_b32 s{sKVo}, s{sKVl}\ns_mov_b32 s{sCnt}, 32')
        self.p.label('L_redo_max')
        nt = ' nt' if self.c.nt else ''
        e(f's_mov_b32 m0, s{sKVl}\ns_nop 0')
        for p_ in range(2): e(f'buffer_load_dwordx4 v{vKVd+p_}, {sr(sK,4)}, s{sKVo} offen offset:{1024*p_}{nt} lds ;@x')
        e(f's_add_u32 s{sKVo}, s{sKVo}, 8192')
        e('s_waitcnt vmcnt(0)\ns_barrier')
        for x in self.k_reads(0).values(): e(x)
        e('s_waitcnt lgkmcnt(0)')
        for qb in range(4):
            for u in range(2):
                d = vr(ACC + (qb*2+u)*4, 4)
                for t in range(4):
                    e(f'v_mfma_f32_16x16x32_bf16 {d}, {ar(aK+(u*4+t)*4,4)}, {ar(aQ+(qb*4+t)*4,4)}, {"0" if t == 0 else d}')
        e('s_nop 7\ns_barrier')
        for qb in range(4):
            r = ACC + qb*8
            for i in range(0, 8, 2): e(f'v_max3_f32 v{M+qb}, v{M+qb}, v{r+i}, v{r+i+1}')
        e(f's_sub_u32 s{sCnt}, s{sCnt}, 1\ns_cmp_lg_u32 s{sCnt}, 0\ns_cbranch_scc1 L_redo_max')
        T = vT
        for qb in range(4): e(f'v_mov_b32 v{T+2*qb}, v{M+qb}') if False else None
        for qb in range(4):
            e(f'v_mov_b32 v{SB+2*qb}, v{M+qb}\nv_mov_b32 v{SB+2*qb+1}, v{M+qb}')
        e('s_nop 1')
        for qb in range(4): e(f'v_permlane32_swap_b32 v{SB+2*qb}, v{SB+2*qb+1}')
        for qb in range(4): e(f'v_max_f32 v{SB+2*qb}, v{SB+2*qb}, v{SB+2*qb+1}')
        for qb in range(4): e(f'v_mov_b32 v{SB+2*qb+1}, v{SB+2*qb}')
        e('s_nop 1')
        for qb in range(4): e(f'v_permlane16_swap_b32 v{SB+2*qb}, v{SB+2*qb+1}')
        for qb in range(4): e(f'v_max_f32 v{SB+2*qb}, v{SB+2*qb}, v{SB+2*qb+1}')
        for qb in range(4):
            for i in range(4): e(f'v_sub_f32 v{NM+4*qb+i}, 0, v{SB+2*qb}')
        e(self.kv0())
        for x in self.kv_dma(0, doV=False) + self.kv_dma(1) + self.kv_dma(2) + self.kv_dma(3): e(re.sub(r';@\w+', ';@x', x))
        e('s_waitcnt vmcnt(12)\ns_barrier')
        for x in self.k_reads(0).values(): e(x)
        e(f's_waitcnt lgkmcnt(0)\ns_mov_b32 s{sRedo}, 1\ns_branch L_att_units')

    def dump_q(self):
        e = self.e
        e(f's_lshl_b32 s{sT0}, s{sH}, 16\ns_lshl_b32 s{sT1}, s{sW}, 14\ns_add_u32 s{sT0}, s{sT0}, s{sT1}')
        for f in range(16):
            e(f's_add_u32 s{sT1}, s{sT0}, {f*1024}')
            e(f'buffer_store_dwordx4 {ar(aQ+4*f,4)}, v{vL16}, {sr(sOW,4)}, s{sT1} offen')
        e('s_waitcnt vmcnt(0)')

    def build(self):
        c = self.c
        self.setup()
        self.q_phase()
        if c.stop == 'q':
            self.e('s_nop 4'); self.dump_q()
        else:
            self.attention()
            self.stamp()
            self.publish_o()
            if c.stop != 'attn':
                self.o_phase()
                self.final()
        self.p.label('L_fin')
        if c.stamps:
            self.stamp()
            e = self.e
            e('s_waitcnt vmcnt(0)')
            self.stamp()
            n = self.nstamp
            e('s_waitcnt lgkmcnt(0) vmcnt(0)')
            e(f's_mul_i32 s{sT0}, s2, {8*16}\ns_add_u32 s{sT0}, s{sT0}, 0x0F000000\nv_mov_b32 v{vT}, s{sT0}')
            e(f's_cmp_lg_u32 s{sW}, 0\ns_cbranch_scc1 L_end\ns_mov_b64 exec, 1')
            for i in range(n):
                e(f'v_mov_b32 v{vT+2}, s{sStamp+2*i}\nv_mov_b32 v{vT+3}, s{sStamp+2*i+1}\nglobal_store_dwordx2 v{vT}, {vr(vT+2,2)}, s[18:19] offset:{8*i}\ns_nop 1')
        self.p.label('L_end')
        self.e('s_endpgm')
        if c.stop not in ('q', 'attn'): self.redo()
        lines = resolve_waits(self.p.lines)
        return lines

def len_step(lst, span):
    n = sum(1 for x in lst if x.startswith('buffer_load'))
    m = sum(1 for x in lst if ' m0,' in x)
    return max(1, (span - m) // max(1, n))

LOOPS = ('L_q', 'L_att', 'L_redo_max')
def make_trace(lines, reps=3):
    labels = {l[:-1]: i for i, l in enumerate(lines) if l.endswith(':')}
    loopd = {}
    for i, l in enumerate(lines):
        t = l.strip().split()
        if t and (t[0].startswith('s_cbranch') or t[0] == 's_branch') and len(t) > 1 and t[1] in LOOPS and labels[t[1]] < i:
            loopd[labels[t[1]]] = i
    trace = []; i = 0
    while i < len(lines):
        if i in loopd:
            b = loopd[i]
            trace += list(range(i, b+1)) * reps
            i = b + 1
        else:
            trace.append(i); i += 1
    return trace

VMOPS = ('buffer_load', 'buffer_store', 'global_load', 'global_store', 'global_atomic', 'buffer_atomic')
def resolve_waits(lines):
    trace = make_trace(lines)
    vneed = {}
    hist = []
    SKIP = {'L_o_w0'}
    skipping = None
    for li in trace:
        l = lines[li]; t = l.strip()
        if t.startswith(VMOPS):
            m = re.search(r';@(\w+)', t)
            tag = m.group(1) if m else ''
            if tag == 'x': continue
            hist.append(tag)
        m = re.search(r'vmcnt\(@(@?\w+)@\)', t)
        if m:
            tag = m.group(1)
            if tag == '@Q':
                n = 12
            elif tag == '@Q6':
                n = 12
            else:
                idx = [i for i, x in enumerate(hist) if x == tag]
                n = len(hist) - 1 - idx[-1] if idx else 63
            n = min(n, 63)
            vneed[li] = min(vneed.get(li, 99), n)
    out = []
    for i, l in enumerate(lines):
        if i in vneed: l = re.sub(r'vmcnt\(@@?\w+@\)', f'vmcnt({vneed[i]})', l)
        out.append(l)
    lines = out
    need = {}; q = []
    for li in trace:
        I = parse(lines[li])
        if I is None: continue
        if I.op == 's_waitcnt':
            for tok in I.ops:
                if tok.startswith('lgkmcnt'):
                    n = int(tok[8:-1]); q = q[len(q)-n:] if 0 < n < len(q) else ([] if n == 0 else q)
            continue
        touched = set(I.r + I.srcC + (I.w if I.cls != 'dsr' else []))
        k = None
        for idx, regs in enumerate(q):
            if regs & touched or (I.cls == 'dsr' and regs & set(I.w)): k = idx
        if k is not None:
            n = min(len(q) - 1 - k, 15)
            need[li] = min(need.get(li, 99), n)
            q = q[len(q)-n:] if n > 0 else []
        if I.cls == 'dsr': q.append(set(I.w))
        elif I.cls == 'dsw': q.append(set())
    out = []
    for i, l in enumerate(lines):
        if i in need: out.append(f'  s_waitcnt lgkmcnt({need[i]})')
        out.append(l)
    return out

HDR = f'''; fused q-proj + attention + o-proj, one workgroup per (batch, head); written with my own generator
; @launch grid=(256,1,1) block=(256,1,1) lds=163840
.amdgcn_target "amdgcn-amd-amdhsa--gfx950"
.text
.globl {KN}
.p2align 8
.type {KN},@function
{KN}:
'''
FTR = f'''
.section .rodata,"a"
.p2align 6
.amdhsa_kernel {KN}
  .amdhsa_next_free_vgpr 512
  .amdhsa_next_free_sgpr 102
  .amdhsa_accum_offset 256
  .amdhsa_group_segment_fixed_size 0
  .amdhsa_kernarg_size 64
  .amdhsa_user_sgpr_count 2
  .amdhsa_user_sgpr_kernarg_segment_ptr 1
  .amdhsa_system_sgpr_workgroup_id_x 1
.end_amdhsa_kernel
'''

def assemble_size(body):
    import subprocess, tempfile, os
    with tempfile.TemporaryDirectory() as d:
        s = os.path.join(d, 'k.s'); o = os.path.join(d, 'k.o')
        open(s, 'w').write(HDR + body + FTR)
        r = subprocess.run(['clang', '-x', 'assembler', '-target', 'amdgcn-amd-amdhsa', '-mcpu=gfx950', '-c', s, '-o', o], capture_output=True, text=True)
        if r.returncode: print(r.stderr[:3000]); sys.exit(1)
        r = subprocess.run(['llvm-readelf', '-S', o], capture_output=True, text=True)
        for ln in r.stdout.split('\n'):
            if ' .text ' in ln:
                f = ln.split(); k = f.index('PROGBITS'); return int(f[k+3], 16)
    return 0

def main():
    import argparse
    ap = argparse.ArgumentParser()
    ap.add_argument('-o', default='standalone__mha_block_cached__near_ridge.s')
    for n in ('stamps', 'cyc', 'norot', 'nopf', 'xstamps', 'nont', 'nowarm', 'fakeq'): ap.add_argument('--' + n, action='store_true')
    ap.add_argument('--kvspread', type=int, default=0); ap.add_argument('--woloop', type=int, default=0); ap.add_argument('--outtouch', type=int, default=0); ap.add_argument('--wotouch', type=int, default=1); ap.add_argument('--krot', type=int, default=0); ap.add_argument('--psleep', type=int, default=0); ap.add_argument('--qp', type=int, default=1); ap.add_argument('--lsum', default='ones'); ap.add_argument('--qi', action='store_true'); ap.add_argument('--rotp', default='1,1,1'); ap.add_argument('--stampset', default=''); ap.add_argument('--abl', default=''); ap.add_argument('--outf', default='sc1'); ap.add_argument('--mapping', default='m48'); ap.add_argument('--stop', default=None)
    ap.add_argument('--qflags', default=''); ap.add_argument('--stf', default='sc1'); ap.add_argument('--ldf', default='sc1'); ap.add_argument('--wof', default='')
    a = ap.parse_args()
    c = Cfg(); c.mapping = a.mapping; c.stamps = a.stamps; c.cyc = a.cyc; c.stop = a.stop; c.rot = not a.norot
    c.prefetch_code = not a.nopf; c.xstamps = a.xstamps; c.qflags = a.qflags; c.st_flags = a.stf; c.ld_flags = a.ldf; c.wo_flags = a.wof; c.nt = not a.nont; c.warm_wo = not a.nowarm; c.fakeq = a.fakeq; c.abl = a.abl; c.stampset = a.stampset; c.lsum = a.lsum; c.psleep = a.psleep; c.krot = a.krot; c.wotouch = a.wotouch; c.outtouch = a.outtouch; c.qp = a.qp; c.qi = a.qi; c.ra, c.rb, c.rs = map(int, a.rotp.split(',')); c.kvspread = a.kvspread; c.woloop = a.woloop; c.out_flags = a.outf
    g = Gen(c)
    lines = g.build()
    body = '\n'.join(lines)
    if c.prefetch_code:
        est = assemble_size(body.replace('; PFCODE', ''))
        n = max(1, (est - 64) // 4096)
        magic = (65536 + n - 1) // n
        assert all(((v*magic) >> 16) == v//n for v in range(33))
        pf = [f'  s_mul_i32 s{sT3}, s{sT2}, {magic}', f'  s_lshr_b32 s{sT3}, s{sT3}, 16', f'  s_mul_i32 s{sT3}, s{sT3}, {n}',
              f'  s_sub_u32 s{sT2}, s{sT2}, s{sT3}', f'  s_lshl_b32 s{sT2}, s{sT2}, 12', f'  v_add_u32 v{vT}, s{sT2}, v{vT}',
              f'  global_load_dwordx4 {vr(vT+18,4)}, v{vT}, s[100:101]']
        body = body.replace('; PFCODE', '\n'.join(pf))
    body = re.sub(r' *;@\w+', '', body)
    open(a.o, 'w').write(HDR + body + '\n' + FTR)
    ls = body.split('\n')
    check_trace([ls[i] for i in make_trace(ls, reps=2)], 'kernel')
    print('wrote', a.o, 'code bytes ~', assemble_size(body), 'stamps', g.nstamp)

main()
```
